```python
import torch

def _softmax(x, axis=-1):
    return torch.softmax(x, dim=axis)
def _gelu(x):
    return torch.nn.functional.gelu(x, approximate="tanh")
def _silu(x):
    return torch.nn.functional.silu(x)
def _sigmoid(x):
    return torch.sigmoid(x)
def _layernorm(x, axis=-1, eps=1e-5):
    m = x.mean(dim=axis, keepdim=True)
    v = x.var(dim=axis, keepdim=True, unbiased=False)
    return (x - m) / torch.sqrt(v + eps)
def _scatter_add(tgt, idx, src, axis=0):
    return tgt.clone().index_add_(axis, idx, src)
def _segment_sum(src, seg, n):
    out = torch.zeros((n,) + src.shape[1:], dtype=src.dtype)
    return out.index_add_(0, seg, src)
def _pad(x, pw):
    flat = tuple(v for pair in reversed(pw) for v in pair)
    return torch.nn.functional.pad(x, flat)

kernel_name = 'recurrent_scan__gqa_block_cached__glu_gated_glu__decode'

def setup_inputs():

    _w = (lambda a: (lambda t: t.to(torch.bfloat16) if t.is_floating_point() else t)(torch.as_tensor(a)))
    def _A_setup():
        B, Sq, D = 8, 1, 1024
        Hq, Hkv, Sk, Dh = 32, 4, 4096, 128
        assert Hq % Hkv == 0, (Hq, Hkv)
        return {
            "x": _w((lambda *s: torch.randn(*s, dtype=torch.bfloat16) * 0.05)(B, Sq, D)),
            "k_cache": _w((lambda *s: torch.randn(*s, dtype=torch.bfloat16) * 1.6)(B, Hkv, Sk, Dh)),
            "v_cache": _w((lambda *s: torch.randn(*s, dtype=torch.bfloat16) * 0.2)(B, Hkv, Sk, Dh)),
            "wq": _w((lambda *s: torch.randn(*s, dtype=torch.bfloat16) * 1.6)(D, Hq * Dh) * (D ** -0.5)),
            "wo": _w((lambda *s: torch.randn(*s, dtype=torch.bfloat16) * 0.2)(Hq * Dh, D) * ((Hq * Dh) ** -0.5)),
        }
    _A_in = _A_setup()

    def _B_setup():
        B, S, D, F = 8, 1, 1024, 3584
        return {
            "x": _w((lambda *s: torch.randn(*s, dtype=torch.bfloat16) * 0.05)(B, S, D)),
            "w_gate": _w((lambda *s: torch.randn(*s, dtype=torch.bfloat16) * 0.2)(D, F)),
            "w_up": _w((lambda *s: torch.randn(*s, dtype=torch.bfloat16) * 0.1)(D, F)),
            "w_down": _w((lambda *s: torch.randn(*s, dtype=torch.bfloat16) * 0.1)(F, D)),
        }
    _B_in = _B_setup()

    return {
        "A_x": _A_in["x"],
        "A_k_cache": _A_in["k_cache"],
        "A_v_cache": _A_in["v_cache"],
        "A_wq": _A_in["wq"],
        "A_wo": _A_in["wo"],
        "B_x": _B_in["x"],
        "B_w_gate": _B_in["w_gate"],
        "B_w_up": _B_in["w_up"],
        "B_w_down": _B_in["w_down"],
    }

def reference(A_x, A_k_cache, A_v_cache, A_wq, A_wo, B_x, B_w_gate, B_w_up, B_w_down):
    def _A_ref(x, k_cache, v_cache, wq, wo):
        B, Sq, D = x.shape
        Hq, Dh = 32, 128
        Hkv = k_cache.shape[1]
        rep = Hq // Hkv
        q = (lambda x, *d: x.permute(*d))((x @ wq).reshape(B, Sq, Hq, Dh), 0, 2, 1, 3)
        k = (lambda x, n, axis: torch.repeat_interleave(x, n, dim=axis))(k_cache, rep, axis=1)
        v = (lambda x, n, axis: torch.repeat_interleave(x, n, dim=axis))(v_cache, rep, axis=1)
        scores = torch.einsum("bhqd,bhkd->bhqk", q, k) * (Dh ** -0.5)
        p = _softmax(scores, axis=-1)
        o = torch.einsum("bhqk,bhkd->bhqd", p, v)
        return (lambda x, *d: x.permute(*d))(o, 0, 2, 1, 3).reshape(B, Sq, Hq * Dh) @ wo

    def _B_ref(x, w_gate, w_up, w_down):
        g = torch.einsum("bsd,df->bsf", x, w_gate)
        u = torch.einsum("bsd,df->bsf", x, w_up)
        h = _sigmoid(g) * u
        return torch.einsum("bsf,fd->bsd", h, w_down)

    x = A_x
    xn = _layernorm(x, axis=-1)
    s = _A_ref(xn, A_k_cache, A_v_cache, A_wq, A_wo)
    g = _silu(_B_ref(xn, B_w_gate, B_w_up, B_w_down))
    return x + s * g
```

```python
import sys
KN="recurrent_scan__gqa_block_cached__glu_gated_glu__decode_kernel"

class G:
    def __init__(s): s.o=[]; s.lbl=0
    def __call__(s, t):
        for line in t.strip("\n").split("\n"):
            s.o.append("    "+line.strip())
    def label(s, n): s.o.append(n+":")
    def new(s, p="L"):
        s.lbl+=1; return f"{p}_{s.lbl}"
    def text(s): return "\n".join(s.o)+"\n"

LDS_DUMP=0; LDS_XN=49152; LDS_QS=53248; LDS_HS=55296; LDS_OS=57344; LDS_SYNC=59392; LDS_MLD=59648
LDS_TOTAL=59904
WS_QP=0; WS_GP=0x80000; WS_UP=0x100000; WS_AP=0x200000; WS_ML=0x300000; WS_SP=0x400000; WS_DP=0x500000
WS_BYTES=268435456
SPIN_MAX=200000

S_W=2
P_X=16;P_K=18;P_V=20;P_WQ=22;P_WO=24;P_BX=26;P_G=28;P_U=30;P_D=32;P_OUT=34;P_DBG=36;P_WS=38
R_K=40;R_V=44;R_WQ=48;R_G=52;R_U=56;R_D=60;R_WO=64
R_X=40;R_OUT=44;R_DBG=48;R_WS=52
S_WAVE=68; S_T=69; S_T2=70; S_SELLO=71; S_SELHI=72
S_KS=73; S_CS=74; S_A=75; S_B=76; S_C=77; S_D=78; S_E=79; S_F=80; S_SPIN=81
S_EX=82
S_KB=84; S_VB=85; S_DB=86; S_WOB=87; S_C2=88

def srd(g, r, p, nbytes):
    g(f"s_mov_b32 s{r}, s{p}\ns_and_b32 s{r+1}, s{p+1}, 0xffff\ns_mov_b32 s{r+2}, {nbytes}\ns_mov_b32 s{r+3}, 0x20000")

def unit_loads(g, dst, rsrd, vaddr, sbase, offs, flags="nt"):
    cur=None
    for j,off in enumerate(offs):
        hi=off & ~0xfff; lo=off & 0xfff
        if hi==0: sreg=f"s{sbase}"
        else:
            if cur!=hi:
                g(f"s_add_u32 s{S_T}, s{sbase}, {hi}"); cur=hi
            sreg=f"s{S_T}"
        g(f"buffer_load_dwordx4 v[{dst+4*j}:{dst+4*j+3}], v{vaddr}, s[{rsrd}:{rsrd+3}], {sreg} offen offset:{lo} {flags}")

ACC=32; BOP=16; TA=8; TB=12
def unit_compute(g, u, bop, first):
    def perms(t, jp):
        q=jp>>1; sel=S_SELHI if jp&1 else S_SELLO
        for i in range(4):
            g(f"v_perm_b32 v{t+i}, v{u+4*(2*i+1)+q}, v{u+4*(2*i)+q}, s{sel}")
    def mf(t, jp):
        c = "0" if first else f"v[{ACC+4*jp}:{ACC+4*jp+3}]"
        g(f"v_mfma_f32_16x16x32_bf16 v[{ACC+4*jp}:{ACC+4*jp+3}], v[{t}:{t+3}], v[{bop}:{bop+3}], {c}")
    T=[TA,TB]
    perms(T[0],0)
    for jp in range(8):
        if jp<7: perms(T[(jp+1)&1], jp+1)
        else: g("s_nop 1")
        mf(T[jp&1], jp)

def dump_acc(g, vaddr, base):
    g("s_nop 7\ns_nop 1")
    for jp in range(8):
        g(f"ds_write_b128 v{vaddr}, v[{ACC+4*jp}:{ACC+4*jp+3}] offset:{base+jp*512}")

U=[64+32*i for i in range(6)]

def gen(mimic=True, nt="nt"):
    g=G()
    hdr=f"""; fused persistent decode kernel: 256 WGs x (4 worker + 4 helper waves)
; @launch grid=(256,1,1) block=(512,1,1) lds={LDS_TOTAL}
.amdgcn_target "amdgcn-amd-amdhsa--gfx950"
.text
.globl {KN}
.p2align 8
.type {KN},@function
{KN}:
"""
    g(f"s_cmp_ge_u32 s2, 256\ns_cbranch_scc1 L_end")
    g("s_load_dwordx16 s[16:31], s[0:1], 0\ns_load_dwordx8 s[32:39], s[0:1], 64")
    g(f"v_lshrrev_b32 v1, 6, v0\nv_and_b32 v0, 63, v0\ns_nop 0\nv_readfirstlane_b32 s{S_WAVE}, v1")
    g(f"s_mov_b32 s{S_SELLO}, 0x05040100\ns_mov_b32 s{S_SELHI}, 0x07060302")
    g(f"s_and_b32 s{S_KS}, s2, 3\ns_lshr_b32 s{S_CS}, s2, 2")
    g("s_nop 3")
    g(f"s_cmp_ge_u32 s{S_WAVE}, 4")
    g("s_waitcnt lgkmcnt(0)")
    g("s_cbranch_scc1 L_helper")
    srd(g,R_K,P_K,33554432); srd(g,R_V,P_V,33554432); srd(g,R_WQ,P_WQ,8388608)
    srd(g,R_G,P_G,7340032); srd(g,R_U,P_U,7340032); srd(g,R_D,P_D,7340032); srd(g,R_WO,P_WO,8388608)
    g(f"s_cmp_ge_u32 s2, 224\ns_cselect_b32 s{R_G+2}, 0, s{R_G+2}\ns_cselect_b32 s{R_U+2}, 0, s{R_U+2}\ns_cselect_b32 s{R_D+2}, 0, s{R_D+2}")
    g("v_lshrrev_b32 v1, 4, v0\nv_and_b32 v2, 7, v0\nv_bfe_u32 v3, v0, 3, 1\nv_and_b32 v4, 15, v0")
    g("v_lshlrev_b32 v5, 5, v3\nv_lshl_add_u32 v5, v1, 3, v5")
    g("v_lshlrev_b32 v6, 13, v5\nv_lshl_add_u32 v6, v2, 4, v6")
    g("v_mul_u32_u24 v7, 7168, v5\nv_lshl_add_u32 v7, v2, 4, v7")
    g(f"s_lshl_b32 s{S_A}, s{S_KS}, 8\ns_lshl_b32 s{S_B}, s{S_WAVE}, 6\ns_add_u32 s{S_A}, s{S_A}, s{S_B}")
    g(f"s_lshl_b32 s{S_C}, s{S_CS}, 7")
    g(f"s_lshl_b32 s{S_D}, s{S_A}, 13\ns_add_u32 s{S_D}, s{S_D}, s{S_C}")
    g(f"s_mul_i32 s{S_E}, s{S_A}, 7168\ns_add_u32 s{S_E}, s{S_E}, s{S_C}")
    unit_loads(g,U[0],R_WQ,6,S_D,[j*8192 for j in range(8)],nt)
    unit_loads(g,U[1],R_G,7,S_E,[j*7168 for j in range(8)],nt)
    unit_loads(g,U[2],R_U,7,S_E,[j*7168 for j in range(8)],nt)
    g("v_lshlrev_b32 v6, 8, v4\nv_lshl_add_u32 v6, v1, 4, v6")
    g("v_lshlrev_b32 v7, 10, v1\nv_lshl_add_u32 v7, v4, 4, v7")
    g(f"s_lshl_b32 s{S_KB}, s2, 17\ns_lshl_b32 s{S_B}, s{S_WAVE}, 15\ns_add_u32 s{S_KB}, s{S_KB}, s{S_B}")
    koffs=lambda t:[t*8192+T*4096+kk*64 for T in range(2) for kk in range(4)]
    voffs=lambda t:[t*8192+j*256 for j in range(4)]+[t*8192+4096+j*256 for j in range(4)]
    unit_loads(g,U[3],R_K,6,S_KB,koffs(0),nt)
    unit_loads(g,U[4],R_K,6,S_KB,koffs(1),nt)
    unit_loads(g,U[5],R_K,6,S_KB,koffs(2),nt)
    g(f"s_lshr_b32 s{S_DB}, s2, 3\ns_lshl_b32 s{S_DB}, s{S_DB}, 18\ns_and_b32 s{S_B}, s2, 7\ns_lshl_b32 s{S_B}, s{S_B}, 8\ns_add_u32 s{S_DB}, s{S_DB}, s{S_B}")
    g(f"s_lshl_b32 s{S_B}, s{S_WAVE}, 16\ns_add_u32 s{S_DB}, s{S_DB}, s{S_B}")
    g(f"v_lshlrev_b32 v8, 9, v2\nv_lshl_add_u32 v8, v5, 1, v8\ns_lshl_b32 s{S_B}, s{S_WAVE}, 7\nv_add_u32 v8, s{S_B}, v8")
    g(f"v_lshlrev_b32 v5, 7, v1\nv_lshl_add_u32 v5, v2, 4, v5\ns_lshl_b32 s{S_B}, s{S_WAVE}, 12\nv_add_u32 v5, s{S_B}, v5")
    g("v_lshrrev_b32 v9, 1, v1\nv_cmp_eq_u32 s[90:91], v3, v9\nv_cmp_eq_u32 s[92:93], 0, v3")
    g("s_barrier")
    g(f"ds_read_b128 v[{BOP}:{BOP+3}], v8 offset:{LDS_XN}")
    g("s_waitcnt vmcnt(40) lgkmcnt(0)")
    unit_compute(g,U[0],BOP,True)
    unit_loads(g,U[0],R_K,6,S_KB,koffs(3),nt)
    g("s_mov_b64 exec, s[90:91]"); dump_acc(g,5,LDS_DUMP); g("s_mov_b64 exec, -1")
    g("s_waitcnt vmcnt(40)")
    unit_compute(g,U[1],BOP,True)
    unit_loads(g,U[1],R_V,7,S_KB,voffs(0),nt)
    g("s_mov_b64 exec, s[90:91]"); dump_acc(g,5,LDS_DUMP+16384); g("s_mov_b64 exec, -1")
    g("s_waitcnt vmcnt(40)")
    unit_compute(g,U[2],BOP,True)
    unit_loads(g,U[2],R_V,7,S_KB,voffs(1),nt)
    g("s_mov_b64 exec, s[90:91]"); dump_acc(g,5,LDS_DUMP+32768); g("s_mov_b64 exec, -1")
    g("s_waitcnt lgkmcnt(0)\ns_barrier")
    g("v_lshlrev_b32 v3, 14, v1\nv_lshl_add_u32 v3, v4, 4, v3")
    g("v_lshlrev_b32 v8, 8, v2\nv_lshl_add_u32 v8, v1, 4, v8")
    g("s_barrier")
    for kk in range(4):
        g(f"ds_read_b128 v[{BOP+4*kk}:{BOP+4*kk+3}], v8 offset:{LDS_QS+kk*64}")
    g("s_waitcnt lgkmcnt(0)")
    kbuf=[U[3],U[4],U[5],U[0]]
    def qk(t):
        u=kbuf[t]
        for kk in range(4):
            for T in range(2):
                a=ACC+4*(2*t+T)
                c="0" if kk==0 else f"v[{a}:{a+3}]"
                g(f"v_mfma_f32_16x16x32_bf16 v[{a}:{a+3}], v[{u+16*T+4*kk}:{u+16*T+4*kk+3}], v[{BOP+4*kk}:{BOP+4*kk+3}], {c}")
    g("s_waitcnt vmcnt(40)"); qk(0); unit_loads(g,U[3],R_V,7,S_KB,voffs(2),nt)
    g("s_waitcnt vmcnt(40)"); qk(1); unit_loads(g,U[4],R_V,7,S_KB,voffs(3),nt)
    g("s_waitcnt vmcnt(40)"); qk(2); unit_loads(g,U[5],R_D,3,S_DB,[j*2048 for j in range(8)],nt)
    g("s_waitcnt vmcnt(40)"); qk(3); unit_loads(g,U[0],R_WO,3,S_DB,[j*2048 for j in range(8)],nt)
    g("s_nop 7")
    if mimic:
        g(f"s_mov_b32 s{S_A}, 0x3db504f3")
        for i in range(0,32,2):
            a=ACC+i
            g(f"v_cvt_pk_bf16_f32 v8, v{a}, v{a+1}")
            g(f"v_lshlrev_b32 v{a}, 16, v8\nv_and_b32 v{a+1}, 0xffff0000, v8")
            g(f"v_mul_f32 v{a}, s{S_A}, v{a}\nv_mul_f32 v{a+1}, s{S_A}, v{a+1}")
            g(f"v_cvt_pk_bf16_f32 v8, v{a}, v{a+1}")
            g(f"v_lshlrev_b32 v{a}, 16, v8\nv_and_b32 v{a+1}, 0xffff0000, v8")
        g(f"s_mov_b32 s{S_C2}, 0x3fb8aa3b")
    else:
        g(f"s_mov_b32 s{S_C2}, 0x3e0293ee")
    g(f"v_max3_f32 v8, v{ACC}, v{ACC+1}, v{ACC+2}")
    for i in range(3,31,2):
        g(f"v_max3_f32 v8, v8, v{ACC+i}, v{ACC+i+1}")
    g(f"v_max_f32 v8, v8, v{ACC+31}")
    g("v_mov_b32 v9, v8\ns_nop 1\nv_permlane16_swap_b32 v8, v9\ns_nop 1\nv_max_f32 v8, v8, v9\nv_mov_b32 v9, v8\ns_nop 1\nv_permlane32_swap_b32 v8, v9\ns_nop 1\nv_max_f32 v8, v8, v9")
    g(f"v_mul_f32 v8, s{S_C2}, v8")
    for i in range(32):
        g(f"v_fma_f32 v{ACC+i}, v{ACC+i}, s{S_C2}, -v8")
    for i in range(32):
        g(f"v_exp_f32 v{ACC+i}, v{ACC+i}")
    g("s_nop 0")
    for i in range(16):
        g(f"v_cvt_pk_bf16_f32 v{BOP+i}, v{ACC+2*i}, v{ACC+2*i+1}")
    g("v_mov_b32 v9, 0")
    for i in range(16):
        g(f"v_lshlrev_b32 v10, 16, v{BOP+i}\nv_and_b32 v11, 0xffff0000, v{BOP+i}\nv_add_f32 v9, v9, v10\nv_add_f32 v9, v9, v11")
    g("v_mov_b32 v10, v9\ns_nop 1\nv_permlane16_swap_b32 v9, v10\ns_nop 1\nv_add_f32 v9, v9, v10\nv_mov_b32 v10, v9\ns_nop 1\nv_permlane32_swap_b32 v9, v10\ns_nop 1\nv_add_f32 v9, v9, v10")
    g(f"v_lshlrev_b32 v10, 3, v0\ns_lshl_b32 s{S_B}, s{S_WAVE}, 6\nv_add_u32 v10, s{S_B}, v10")
    g("s_mov_b64 exec, 0xff")
    g(f"ds_write_b64 v10, v[8:9] offset:{LDS_MLD}")
    g("s_mov_b64 exec, -1")
    vbuf=[U[1],U[2],U[3],U[4]]
    for t,w in enumerate((40,32,24,16)):
        g(f"s_waitcnt vmcnt({w})")
        unit_compute(g,vbuf[t],BOP+4*t,t==0)
    g("s_mov_b64 exec, s[92:93]"); dump_acc(g,5,LDS_DUMP); g("s_mov_b64 exec, -1")
    g(f"v_lshlrev_b32 v8, 8, v2\nv_lshl_add_u32 v8, v1, 4, v8\ns_lshl_b32 s{S_B}, s{S_WAVE}, 6\nv_add_u32 v8, s{S_B}, v8")
    g("v_mov_b32 v6, v8")
    g("s_waitcnt lgkmcnt(0)\ns_barrier")
    g(f"ds_read_b128 v[{BOP}:{BOP+3}], v6 offset:{LDS_HS}")
    g("s_waitcnt vmcnt(8) lgkmcnt(0)")
    unit_compute(g,U[5],BOP,True)
    g("s_mov_b64 exec, s[92:93]"); dump_acc(g,5,LDS_DUMP+16384); g("s_mov_b64 exec, -1")
    g("s_waitcnt lgkmcnt(0)\ns_barrier")
    g(f"ds_read_b128 v[{BOP}:{BOP+3}], v6 offset:{LDS_OS}")
    g("s_waitcnt vmcnt(0) lgkmcnt(0)")
    unit_compute(g,U[0],BOP,True)
    g("s_mov_b64 exec, s[92:93]"); dump_acc(g,5,LDS_DUMP+32768); g("s_mov_b64 exec, -1")
    g("s_waitcnt lgkmcnt(0)\ns_barrier")
    g("s_branch L_end")

    g.label("L_helper")
    srd(g,R_X,P_X,16384); srd(g,R_OUT,P_OUT,16384); srd(g,R_DBG,P_DBG,256); srd(g,R_WS,P_WS,WS_BYTES)
    g(f"s_sub_u32 s{S_WAVE}, s{S_WAVE}, 4")
    g(f"v_lshlrev_b32 v1, 6, v0\ns_lshl_b32 s{S_B}, s{S_WAVE}, 12")
    for i in range(4):
        g(f"buffer_load_dwordx4 v[{16+4*i}:{19+4*i}], v1, s[{R_X}:{R_X+3}], s{S_B} offen offset:{16*i}")
    g(f"v_mov_b32 v2, 0\nv_mov_b32 v3, {LDS_SYNC}\nds_write_b32 v3, v2")
    g("s_waitcnt vmcnt(0)")
    for i in range(16):
        g(f"v_lshlrev_b32 v{32+2*i}, 16, v{16+i}\nv_and_b32 v{33+2*i}, 0xffff0000, v{16+i}")
    def red32(r,t):
        g(f"s_nop 1\nv_add_f32_dpp v{r}, v{r}, v{r} quad_perm:[1,0,3,2] row_mask:0xf bank_mask:0xf")
        g(f"s_nop 1\nv_add_f32_dpp v{r}, v{r}, v{r} quad_perm:[2,3,0,1] row_mask:0xf bank_mask:0xf")
        g(f"s_nop 1\nv_add_f32_dpp v{r}, v{r}, v{r} row_half_mirror row_mask:0xf bank_mask:0xf")
        g(f"s_nop 1\nv_add_f32_dpp v{r}, v{r}, v{r} row_mirror row_mask:0xf bank_mask:0xf")
        g(f"v_mov_b32 v{t}, v{r}\ns_nop 1\nv_permlane16_swap_b32 v{r}, v{t}\ns_nop 1\nv_add_f32 v{r}, v{r}, v{t}")
    g("v_add_f32 v4, v32, v33")
    for i in range(2,32): g(f"v_add_f32 v4, v4, v{32+i}")
    red32(4,5)
    g("v_mul_f32 v4, 0x3a800000, v4")
    g("v_mov_b32 v6, 0")
    for i in range(32):
        g(f"v_sub_f32 v5, v{32+i}, v4\nv_fmac_f32 v6, v5, v5")
    red32(6,5)
    g("v_mul_f32 v6, 0x3a800000, v6")
    g("v_cvt_pk_bf16_f32 v7, v4, v6\nv_lshlrev_b32 v4, 16, v7\nv_and_b32 v6, 0xffff0000, v7")
    g("v_add_f32 v6, 0x3727c5ac, v6\nv_cvt_pk_bf16_f32 v6, v6, v6\nv_and_b32 v6, 0xffff0000, v6")
    g("v_sqrt_f32 v6, v6\ns_nop 0\nv_cvt_pk_bf16_f32 v6, v6, v6\nv_and_b32 v6, 0xffff0000, v6")
    g("v_rcp_f32 v7, v6\ns_nop 0")
    g("v_fma_f32 v5, -v6, v7, 1.0\nv_fma_f32 v7, v5, v7, v7")
    for i in range(16):
        a=32+2*i
        g(f"v_sub_f32 v{a}, v{a}, v4\nv_sub_f32 v{a+1}, v{a+1}, v4\nv_cvt_pk_bf16_f32 v5, v{a}, v{a+1}")
        g(f"v_lshlrev_b32 v{a}, 16, v5\nv_and_b32 v{a+1}, 0xffff0000, v5")
        g(f"v_mul_f32 v{a}, v{a}, v7\nv_mul_f32 v{a+1}, v{a+1}, v7\nv_cvt_pk_bf16_f32 v{16+i}, v{a}, v{a+1}")
    g(f"v_bfe_u32 v2, v0, 3, 2\nv_cmp_eq_u32 vcc, s{S_KS}, v2\nv_lshrrev_b32 v1, 5, v0\nv_lshlrev_b32 v1, 9, v1\nv_and_b32 v2, 7, v0\nv_lshl_add_u32 v1, v2, 6, v1\ns_lshl_b32 s{S_B}, s{S_WAVE}, 10\nv_add_u32 v1, s{S_B}, v1")
    g("s_mov_b64 exec, vcc")
    for i in range(4):
        g(f"ds_write_b128 v1, v[{16+4*i}:{19+4*i}] offset:{LDS_XN+16*i}")
    g("s_mov_b64 exec, -1")
    g("s_waitcnt lgkmcnt(0)\ns_barrier")
    g(f"s_lshl_b32 s{S_B}, s{S_WAVE}, 6\nv_add_u32 v1, s{S_B}, v0")
    g("v_and_b32 v2, 7, v0\nv_bfe_u32 v3, v0, 3, 1\nv_bfe_u32 v4, v0, 3, 2")
    g("s_barrier")
    def flag_store(val):
        g(f"s_waitcnt vmcnt(0)")
        g(f"v_mov_b32 v8, {val}\nv_mov_b32 v9, s2\ns_mov_b64 exec, 1")
        g(f"buffer_store_byte v8, v9, s[{R_DBG}:{R_DBG+3}], 0 offen sc1")
        g("s_mov_b64 exec, -1")
    def poll(vidx, val, nl):
        L=g.new("Lpoll"); D=g.new("Lpd")
        mask = (1<<nl)-1
        g(f"s_mov_b32 s{S_SPIN}, 0")
        g(f"s_mov_b32 s{S_A}, 0x{mask & 0xffffffff:x}\ns_mov_b32 s{S_B}, 0x{mask>>32:x}")
        g.label(L)
        g(f"buffer_load_ubyte v8, v{vidx}, s[{R_DBG}:{R_DBG+3}], 0 offen sc1")
        g("s_waitcnt vmcnt(0)")
        g(f"v_cmp_gt_u32 vcc, {val}, v8")
        g(f"s_nop 1\ns_and_b32 s{S_C}, vcc_lo, s{S_A}\ns_and_b32 s{S_D}, vcc_hi, s{S_B}\ns_or_b32 s{S_C}, s{S_C}, s{S_D}")
        g(f"s_cmp_eq_u32 s{S_C}, 0\ns_cbranch_scc1 {D}")
        g(f"s_add_u32 s{S_SPIN}, s{S_SPIN}, 1\ns_cmp_ge_u32 s{S_SPIN}, {SPIN_MAX}\ns_cbranch_scc1 {D}")
        g(f"s_sleep 2\ns_branch {L}")
        g.label(D)
    def lds_release(val):
        g(f"v_mov_b32 v8, {val}\nv_mov_b32 v9, {LDS_SYNC}\nds_write_b32 v9, v8\ns_waitcnt lgkmcnt(0)")
    def lds_wait(val):
        L=g.new("Llw"); D=g.new("Lld")
        g(f"s_mov_b32 s{S_SPIN}, 0\nv_mov_b32 v9, {LDS_SYNC}")
        g.label(L)
        g(f"ds_read_b32 v8, v9\ns_waitcnt lgkmcnt(0)\nv_readfirstlane_b32 s{S_C}, v8")
        g(f"s_cmp_ge_u32 s{S_C}, {val}\ns_cbranch_scc1 {D}")
        g(f"s_add_u32 s{S_SPIN}, s{S_SPIN}, 1\ns_cmp_ge_u32 s{S_SPIN}, {SPIN_MAX*4}\ns_cbranch_scc1 {D}")
        g(f"s_sleep 1\ns_branch {L}")
        g.label(D)
    def h0_or_wait(pub, vidx_setup, val, nl, syncval):
        A=g.new("Lh"); B=g.new("Lj")
        g(f"s_cmp_lg_u32 s{S_WAVE}, 0\ns_cbranch_scc1 {A}")
        pub()
        vidx_setup()
        poll(10,val,nl)
        lds_release(syncval)
        g(f"s_branch {B}")
        g.label(A)
        lds_wait(syncval)
        g.label(B)

    def pub1():
        g("v_lshrrev_b32 v5, 4, v0")
        g("v_lshlrev_b32 v6, 10, v5\nv_lshl_add_u32 v6, v3, 7, v6\nv_lshl_add_u32 v6, v2, 4, v6")
        g("v_lshlrev_b32 v7, 14, v2\nv_lshl_add_u32 v7, v3, 7, v7\nv_lshl_add_u32 v7, v5, 5, v7")
        g(f"s_lshl_b32 s{S_E}, s{S_KS}, 17\ns_lshl_b32 s{S_F}, s{S_CS}, 8\ns_add_u32 s{S_E}, s{S_E}, s{S_F}")
        skip=g.new("Lsk")
        for mat,base in enumerate((WS_QP,WS_GP,WS_UP)):
            if mat==1:
                g(f"s_cmp_ge_u32 s2, 224\ns_cbranch_scc1 {skip}")
            for jj in range(2):
                n=0
                for wv in range(4):
                    for e in range(2):
                        g(f"ds_read_b128 v[{64+4*n}:{67+4*n}], v6 offset:{LDS_DUMP+mat*16384+wv*4096+jj*512+e*256}"); n+=1
                g("s_waitcnt lgkmcnt(0)")
                d=16+4*(2*mat+jj)
                for r in range(4):
                    g(f"v_add_f32 v{d+r}, v{64+r}, v{68+r}")
                    for n in range(2,8): g(f"v_add_f32 v{d+r}, v{d+r}, v{64+4*n+r}")
                g(f"s_add_u32 s{S_F}, s{S_E}, {base}")
                g(f"buffer_store_dwordx4 v[{d}:{d+3}], v7, s[{R_WS}:{R_WS+3}], s{S_F} offen offset:{16*jj} sc1")
        g.label(skip)
        flag_store(1)
    def idx_q():
        g(f"s_lshr_b32 s{S_E}, s2, 3\ns_and_b32 s{S_E}, s{S_E}, 3\ns_lshl_b32 s{S_E}, s{S_E}, 6\nv_add_u32 v10, s{S_E}, v0")
    h0_or_wait(pub1, idx_q, 1, 64, 1)
    g(f"s_lshr_b32 s{S_E}, s2, 5\ns_lshl_b32 s{S_E}, s{S_E}, 14\ns_lshr_b32 s{S_F}, s2, 3\ns_and_b32 s{S_F}, s{S_F}, 3\ns_lshl_b32 s{S_F}, s{S_F}, 12\ns_add_u32 s{S_E}, s{S_E}, s{S_F}")
    g("v_lshlrev_b32 v5, 4, v1")
    for ks in range(4):
        g(f"s_add_u32 s{S_F}, s{S_E}, {WS_QP+ks*131072}")
        g(f"buffer_load_dwordx4 v[{16+4*ks}:{19+4*ks}], v5, s[{R_WS}:{R_WS+3}], s{S_F} offen sc1")
    g("v_lshrrev_b32 v6, 4, v1\nv_lshlrev_b32 v6, 7, v6\nv_lshl_add_u32 v6, v3, 6, v6\nv_lshl_add_u32 v6, v2, 1, v6")
    g("s_waitcnt vmcnt(0)")
    for r in range(4):
        g(f"v_add_f32 v{16+r}, v{16+r}, v{20+r}\nv_add_f32 v{24+r}, v{24+r}, v{28+r}\nv_add_f32 v{16+r}, v{16+r}, v{24+r}")
    def write4(base):
        g("v_cvt_pk_bf16_f32 v20, v16, v17\nv_cvt_pk_bf16_f32 v21, v18, v19")
        g(f"ds_write_b16 v6, v20 offset:{base}\nds_write_b16_d16_hi v6, v20 offset:{base+16}\nds_write_b16 v6, v21 offset:{base+32}\nds_write_b16_d16_hi v6, v21 offset:{base+48}")
    write4(LDS_QS)
    g("s_waitcnt lgkmcnt(0)\ns_barrier")
    skiph=g.new("Lskh")
    g(f"s_cmp_ge_u32 s2, 224\ns_cbranch_scc1 {skiph}")
    def idx_h():
        g(f"s_and_b32 s{S_E}, s2, 0xf8\nv_add_u32 v10, s{S_E}, v2")
    h0_or_wait(lambda:None, idx_h, 1, 8, 2)
    g("v_lshrrev_b32 v5, 5, v1\nv_lshlrev_b32 v5, 14, v5\nv_and_b32 v7, 31, v1\nv_lshl_add_u32 v5, v7, 4, v5")
    g(f"s_lshr_b32 s{S_E}, s2, 3\ns_lshl_b32 s{S_E}, s{S_E}, 9")
    for m,base in enumerate((WS_GP,WS_UP)):
        for ks in range(4):
            g(f"s_add_u32 s{S_F}, s{S_E}, {base+ks*131072}")
            g(f"buffer_load_dwordx4 v[{16+16*m+4*ks}:{19+16*m+4*ks}], v5, s[{R_WS}:{R_WS+3}], s{S_F} offen sc1")
    g("s_waitcnt vmcnt(0)")
    for m in range(2):
        for r in range(4):
            a=16+16*m+r
            g(f"v_add_f32 v{a}, v{a}, v{a+4}\nv_add_f32 v{a+8}, v{a+8}, v{a+12}\nv_add_f32 v{a}, v{a}, v{a+8}")
    def rnd2(a,b,t):
        g(f"v_cvt_pk_bf16_f32 v{t}, v{a}, v{b}\nv_lshlrev_b32 v{a}, 16, v{t}\nv_and_b32 v{b}, 0xffff0000, v{t}")
    rnd2(16,17,5); rnd2(18,19,5); rnd2(32,33,5); rnd2(34,35,5)
    for r in range(4):
        g(f"v_mul_f32 v{16+r}, 0xbfb8aa3b, v{16+r}\nv_exp_f32 v{16+r}, v{16+r}\ns_nop 0\nv_add_f32 v{16+r}, 1.0, v{16+r}\nv_rcp_f32 v{16+r}, v{16+r}\ns_nop 0")
    rnd2(16,17,5); rnd2(18,19,5)
    for r in range(4): g(f"v_mul_f32 v{16+r}, v{16+r}, v{32+r}")
    write4(LDS_HS)
    g.label(skiph)
    g("s_waitcnt lgkmcnt(0)\ns_barrier")
    def pub2():
        g("v_lshrrev_b32 v5, 5, v0")
        g("v_lshlrev_b32 v6, 3, v2")
        for wv in range(4):
            g(f"ds_read_b64 v[{16+2*wv}:{17+2*wv}], v6 offset:{LDS_MLD+64*wv}")
        g("v_lshlrev_b32 v6, 11, v5\nv_lshl_add_u32 v6, v4, 7, v6\nv_lshl_add_u32 v6, v2, 4, v6")
        for jj in range(4):
            for wv in range(4):
                n=jj*4+wv
                g(f"ds_read_b128 v[{64+4*n}:{67+4*n}], v6 offset:{LDS_DUMP+wv*4096+jj*512}")
        g("s_waitcnt lgkmcnt(0)")
        g("v_max3_f32 v24, v16, v18, v20\nv_max_f32 v24, v24, v22")
        for wv in range(4):
            g(f"v_sub_f32 v{26+wv}, v{16+2*wv}, v24\nv_exp_f32 v{26+wv}, v{26+wv}")
        g("s_nop 0\nv_mul_f32 v25, v26, v17\nv_fmac_f32 v25, v27, v19\nv_fmac_f32 v25, v28, v21\nv_fmac_f32 v25, v29, v23")
        g("v_lshlrev_b32 v7, 12, v2\nv_lshl_add_u32 v7, v4, 7, v7\nv_lshl_add_u32 v7, v5, 6, v7")
        g(f"s_lshr_b32 s{S_E}, s2, 3\ns_lshl_b32 s{S_E}, s{S_E}, 15\ns_and_b32 s{S_F}, s2, 7\ns_lshl_b32 s{S_F}, s{S_F}, 9\ns_add_u32 s{S_E}, s{S_E}, s{S_F}\ns_add_u32 s{S_E}, s{S_E}, {WS_AP}")
        for jj in range(4):
            d=32+4*jj
            for r in range(4):
                g(f"v_mul_f32 v{d+r}, v26, v{64+16*jj+r}")
                for wv in range(1,4): g(f"v_fmac_f32 v{d+r}, v{26+wv}, v{64+16*jj+4*wv+r}")
            g(f"buffer_store_dwordx4 v[{d}:{d+3}], v7, s[{R_WS}:{R_WS+3}], s{S_E} offen offset:{16*jj} sc1")
        g(f"v_lshlrev_b32 v7, 6, v2\ns_lshr_b32 s{S_E}, s2, 3\ns_lshl_b32 s{S_E}, s{S_E}, 9\ns_and_b32 s{S_F}, s2, 7\ns_lshl_b32 s{S_F}, s{S_F}, 3\ns_add_u32 s{S_E}, s{S_E}, s{S_F}\ns_add_u32 s{S_E}, s{S_E}, {WS_ML}")
        g("s_mov_b64 exec, 0xff")
        g(f"buffer_store_dwordx2 v[24:25], v7, s[{R_WS}:{R_WS+3}], s{S_E} offen sc1")
        g("s_mov_b64 exec, -1")
        flag_store(2)
    def idx_o():
        g(f"v_lshrrev_b32 v10, 3, v0\nv_lshl_add_u32 v10, v10, 5, v2\ns_lshr_b32 s{S_E}, s2, 6\ns_lshl_b32 s{S_E}, s{S_E}, 3\nv_add_u32 v10, s{S_E}, v10")
    h0_or_wait(pub2, idx_o, 2, 64, 3)
    g("v_lshrrev_b32 v5, 5, v1\nv_and_b32 v7, 31, v1\nv_lshlrev_b32 v8, 17, v5\nv_lshl_add_u32 v8, v7, 4, v8\nv_lshlrev_b32 v9, 11, v5")
    g(f"s_lshr_b32 s{S_E}, s2, 3\ns_lshl_b32 s{S_F}, s{S_E}, 12\ns_add_u32 s{S_F}, s{S_F}, {WS_AP}\ns_lshl_b32 s{S_E}, s{S_E}, 6\ns_add_u32 s{S_E}, s{S_E}, {WS_ML}")
    for i in range(4):
        g(f"buffer_load_dwordx4 v[{16+4*i}:{19+4*i}], v9, s[{R_WS}:{R_WS+3}], s{S_E} offen offset:{16*i} sc1")
    for sp in range(8):
        g(f"buffer_load_dwordx4 v[{64+4*sp}:{67+4*sp}], v8, s[{R_WS}:{R_WS+3}], s{S_F} offen offset:{512*sp} sc1")
    g("v_lshlrev_b32 v6, 8, v5\nv_lshl_add_u32 v6, v4, 6, v6\nv_lshl_add_u32 v6, v2, 1, v6")
    g("s_waitcnt vmcnt(8)")
    g("v_max3_f32 v32, v16, v18, v20\nv_max3_f32 v32, v32, v22, v24\nv_max3_f32 v32, v32, v26, v28\nv_max_f32 v32, v32, v30")
    for sp in range(8):
        g(f"v_sub_f32 v{40+sp}, v{16+2*sp}, v32\nv_exp_f32 v{40+sp}, v{40+sp}")
    g("s_nop 0\nv_mul_f32 v33, v40, v17")
    for sp in range(1,8): g(f"v_fmac_f32 v33, v{40+sp}, v{17+2*sp}")
    g("v_rcp_f32 v34, v33\ns_nop 0\nv_fma_f32 v35, -v33, v34, 1.0\nv_fma_f32 v34, v35, v34, v34")
    g("s_waitcnt vmcnt(0)")
    for r in range(4):
        g(f"v_mul_f32 v{16+r}, v40, v{64+r}")
        for sp in range(1,8): g(f"v_fmac_f32 v{16+r}, v{40+sp}, v{64+4*sp+r}")
        g(f"v_mul_f32 v{16+r}, v{16+r}, v34")
    write4(LDS_OS)
    g("s_waitcnt lgkmcnt(0)\ns_barrier")
    g(f"s_cmp_lg_u32 s{S_WAVE}, 0\ns_cbranch_scc1 L_hb6")
    def pub_wide(region, wsbase):
        g("v_lshrrev_b32 v5, 5, v0")
        g("v_lshlrev_b32 v6, 11, v5\nv_lshl_add_u32 v6, v4, 7, v6\nv_lshl_add_u32 v6, v2, 4, v6")
        for jj in range(4):
            for wv in range(4):
                n=jj*4+wv
                g(f"ds_read_b128 v[{64+4*n}:{67+4*n}], v6 offset:{LDS_DUMP+region*16384+wv*4096+jj*512}")
        g("v_lshlrev_b32 v7, 12, v2\nv_lshl_add_u32 v7, v4, 7, v7\nv_lshl_add_u32 v7, v5, 6, v7")
        g(f"s_lshr_b32 s{S_E}, s2, 3\ns_lshl_b32 s{S_E}, s{S_E}, 15\ns_and_b32 s{S_F}, s2, 7\ns_lshl_b32 s{S_F}, s{S_F}, 9\ns_add_u32 s{S_E}, s{S_E}, s{S_F}\ns_add_u32 s{S_E}, s{S_E}, {wsbase}")
        g("s_waitcnt lgkmcnt(0)")
        for jj in range(4):
            d=32+4*jj+16*(region-1)
            for r in range(4):
                g(f"v_add_f32 v{d+r}, v{64+16*jj+r}, v{68+16*jj+r}\nv_add_f32 v{d+r}, v{d+r}, v{72+16*jj+r}\nv_add_f32 v{d+r}, v{d+r}, v{76+16*jj+r}")
            g(f"buffer_store_dwordx4 v[{d}:{d+3}], v7, s[{R_WS}:{R_WS+3}], s{S_E} offen offset:{16*jj} sc1")
    skd=g.new("Lskd")
    g(f"s_cmp_ge_u32 s2, 224\ns_cbranch_scc1 {skd}")
    pub_wide(1, WS_DP)
    g.label(skd)
    g(f"s_lshr_b32 s{S_A}, s2, 5\ns_lshl_b32 s{S_A}, s{S_A}, 11\ns_and_b32 s{S_B}, s2, 7\ns_lshl_b32 s{S_B}, s{S_B}, 8\ns_add_u32 s{S_A}, s{S_A}, s{S_B}\ns_lshr_b32 s{S_B}, s2, 3\ns_and_b32 s{S_B}, s{S_B}, 3\ns_lshl_b32 s{S_B}, s{S_B}, 6\ns_add_u32 s{S_KB}, s{S_A}, s{S_B}")
    g("v_lshlrev_b32 v11, 1, v2")
    for r in range(4):
        g(f"buffer_load_ushort v{12+r}, v11, s[{R_X}:{R_X+3}], s{S_KB} offen offset:{16*r}")
    g("s_barrier")
    pub_wide(2, WS_SP)
    flag_store(3)
    g(f"s_and_b32 s{S_E}, s2, 7\nv_and_b32 v10, 31, v0\nv_lshlrev_b32 v10, 3, v10\nv_add_u32 v10, s{S_E}, v10")
    poll(10,3,32)
    g(f"v_lshrrev_b32 v5, 3, v0\nv_lshlrev_b32 v6, 15, v5\nv_lshl_add_u32 v6, v2, 4, v6\ns_lshl_b32 s{S_E}, s{S_KB}, 1")
    g("v_cmp_gt_u32 vcc, 4, v5\nv_mov_b32 v7, 0x7ffffff0\ns_nop 1\nv_cndmask_b32 v7, v7, v6, vcc")
    for i in range(4):
        g(f"s_add_u32 s{S_F}, s{S_E}, {WS_SP+i*262144}")
        g(f"buffer_load_dwordx4 v[{16+4*i}:{19+4*i}], v6, s[{R_WS}:{R_WS+3}], s{S_F} offen sc1")
    for i in range(4):
        g(f"s_add_u32 s{S_F}, s{S_E}, {WS_DP+i*262144}")
        g(f"buffer_load_dwordx4 v[{32+4*i}:{35+4*i}], v{7 if i==3 else 6}, s[{R_WS}:{R_WS+3}], s{S_F} offen sc1")
    g("s_waitcnt vmcnt(0)")
    for m in range(2):
        for r in range(4):
            a=16+16*m+r
            g(f"v_add_f32 v{a}, v{a}, v{a+4}\nv_add_f32 v{a+8}, v{a+8}, v{a+12}\nv_add_f32 v{a}, v{a}, v{a+8}")
    regs=[16,17,18,19,32,33,34,35]
    g("s_nop 1")
    for r in regs: g(f"v_add_f32_dpp v{r}, v{r}, v{r} row_ror:8 row_mask:0xf bank_mask:0xf")
    for r in regs: g(f"v_mov_b32 v{r+4}, v{r}")
    g("s_nop 1")
    for r in regs: g(f"v_permlane16_swap_b32 v{r}, v{r+4}")
    g("s_nop 1")
    for r in regs: g(f"v_add_f32 v{r}, v{r}, v{r+4}")
    for r in regs: g(f"v_mov_b32 v{r+4}, v{r}")
    g("s_nop 1")
    for r in regs: g(f"v_permlane32_swap_b32 v{r}, v{r+4}")
    g("s_nop 1")
    for r in regs: g(f"v_add_f32 v{r}, v{r}, v{r+4}")
    rnd2(16,17,5); rnd2(18,19,5); rnd2(32,33,5); rnd2(34,35,5)
    for r in range(4):
        g(f"v_mul_f32 v{20+r}, 0xbfb8aa3b, v{32+r}\nv_exp_f32 v{20+r}, v{20+r}\ns_nop 0\nv_add_f32 v{20+r}, 1.0, v{20+r}\nv_rcp_f32 v{20+r}, v{20+r}\ns_nop 0\nv_mul_f32 v{32+r}, v{32+r}, v{20+r}")
    rnd2(32,33,5); rnd2(34,35,5)
    for r in range(4): g(f"v_mul_f32 v{16+r}, v{16+r}, v{32+r}")
    rnd2(16,17,5); rnd2(18,19,5)
    for r in range(4): g(f"v_lshlrev_b32 v{12+r}, 16, v{12+r}\nv_add_f32 v{16+r}, v{16+r}, v{12+r}")
    g("v_cvt_pk_bf16_f32 v20, v16, v17\nv_cvt_pk_bf16_f32 v21, v18, v19")
    g("s_mov_b64 exec, 0xff")
    g(f"buffer_store_short v20, v11, s[{R_OUT}:{R_OUT+3}], s{S_KB} offen\nbuffer_store_short_d16_hi v20, v11, s[{R_OUT}:{R_OUT+3}], s{S_KB} offen offset:16")
    g(f"buffer_store_short v21, v11, s[{R_OUT}:{R_OUT+3}], s{S_KB} offen offset:32\nbuffer_store_short_d16_hi v21, v11, s[{R_OUT}:{R_OUT+3}], s{S_KB} offen offset:48")
    g.label("L_end")
    g("s_endpgm")
    g.label("L_hb6")
    g("s_barrier\ns_endpgm")
    tail=f""".section .rodata,"a"
.p2align 6
.amdhsa_kernel {KN}
  .amdhsa_next_free_vgpr 256
  .amdhsa_next_free_sgpr 102
  .amdhsa_accum_offset 256
  .amdhsa_group_segment_fixed_size 0
  .amdhsa_kernarg_size 96
  .amdhsa_user_sgpr_count 2
  .amdhsa_user_sgpr_kernarg_segment_ptr 1
  .amdhsa_system_sgpr_workgroup_id_x 1
.end_amdhsa_kernel
"""
    return hdr+g.text()+tail

if __name__=="__main__":
    out = sys.argv[1] if len(sys.argv)>1 else "recurrent_scan__gqa_block_cached__glu_gated_glu__decode.s"
    open(out,"w").write(gen())
```

```python
import sys
KN="recurrent_scan__gqa_block_cached__glu_gated_glu__decode_kernel"

class G:
    def __init__(s): s.o=[]; s.lbl=0
    def __call__(s, t):
        for line in t.strip("\n").split("\n"):
            s.o.append("    "+line.strip())
    def label(s, n): s.o.append(n+":")
    def new(s, p="L"):
        s.lbl+=1; return f"{p}_{s.lbl}"
    def text(s): return "\n".join(s.o)+"\n"

LDS_DUMP=0; LDS_XN=49152; LDS_QS=53248; LDS_HS=55296; LDS_OS=57344; LDS_MLD=59392; LDS_EP=59904
LDS_ADUMP=61440
LDS_TOTAL=61440+32768
WS_QP=0; WS_GP=0x80000; WS_UP=0x100000; WS_AP=0x200000; WS_SP=0x400000; WS_DP=0x500000; WS_ST=0x600000
APS=576
WS_BYTES=268435456
SPIN_MAX=100000
TAGBITS=10; TAGMASK=(1<<TAGBITS)-1; NTAG=(~TAGMASK)&0xffffffff

P_X=16;P_K=18;P_V=20;P_WQ=22;P_WO=24;P_BX=26;P_G=28;P_U=30;P_D=32;P_OUT=34;P_DBG=36;P_WS=38
R_K=40;R_V=44;R_A=48;R_B=52;R_L=56;R_X=60;R_WS=64;R_DBG=68;R_OUT=72
S_WAVE=76; S_T=77; S_SELLO=78; S_SELHI=79; S_KS=80; S_CS=81
S_A=82;S_B=83;S_C=84;S_D=85;S_E=86;S_F=87;S_SPIN=88;S_KB=89;S_LB=90;S_C2=91
S_TAG=92; S_MN=96; S_MW=98; S_W4=100; S_XB=101
S_AB=16; S_BB=17; S_GB=18
ACC=32; BOP=16; TA=8; TB=12
UA=64; UB=96; KU=[128,160]; VU=[192,224]

def srd(g, r, p, nbytes):
    g(f"s_mov_b32 s{r}, s{p}\ns_and_b32 s{r+1}, s{p+1}, 0xffff\ns_mov_b32 s{r+2}, {nbytes}\ns_mov_b32 s{r+3}, 0x20000")

class Stream:
    def __init__(s,g,D,AH,GR=2): s.g=g; s.n=0; s.q=[]; s.D=D; s.AH=AH; s.GR=GR; s.m={}; s.total=0
    def add(s,pre,text): s.q.append((pre,text)); s.total+=1
    def qmark(s,name): s.m[name]=s.total
    def op(s,text):
        assert not s.q
        s.g(text); s.n+=1; s.total+=1
    def pump(s,k,paced=True):
        k=min(k,len(s.q)); i=0
        while i<k:
            c=min(s.GR,k-i)
            if paced and s.n > s.D-c: s.g(f"s_waitcnt vmcnt({s.D-c})")
            for _ in range(c):
                pre,text=s.q.pop(0)
                if pre: s.g(pre)
                s.g(text); s.n+=1
            i+=c
    def need(s,name,extra="",ah=None):
        tgt=s.m[name]; ah=s.AH if ah is None else ah
        s.pump(max(0,tgt+ah-s.n))
        c=min(63,s.n-tgt); s.g(f"s_waitcnt vmcnt({c}) {extra}")

def unit_loads(st, dst, rsrd, vaddr, sbase, offs, flags, name):
    for j,off in enumerate(offs):
        hi=off & ~0xfff; lo=off & 0xfff
        if hi==0: pre=None; sreg=f"s{sbase}"
        else: pre=f"s_add_u32 s{S_T}, s{sbase}, {hi}"; sreg=f"s{S_T}"
        st.add(pre,f"buffer_load_dwordx4 v[{dst+4*j}:{dst+4*j+3}], v{vaddr}, s[{rsrd}:{rsrd+3}], {sreg} offen offset:{lo} {flags}")
    st.qmark(name)

def unit_compute(g, u, bop, first):
    def perms(t, jp):
        q=jp>>1; sel=S_SELHI if jp&1 else S_SELLO
        for i in range(4):
            g(f"v_perm_b32 v{t+i}, v{u+4*(2*i+1)+q}, v{u+4*(2*i)+q}, s{sel}")
    def mf(t, jp):
        c = "0" if first else f"v[{ACC+4*jp}:{ACC+4*jp+3}]"
        g(f"v_mfma_f32_16x16x32_bf16 v[{ACC+4*jp}:{ACC+4*jp+3}], v[{t}:{t+3}], v[{bop}:{bop+3}], {c}")
    T=[TA,TB]
    perms(T[0],0)
    for jp in range(8):
        if jp<7: perms(T[(jp+1)&1], jp+1)
        else: g("s_nop 1")
        mf(T[jp&1], jp)

def dump_acc(g, mask, swave, base, vbase=0):
    g(f"s_lshl_b32 s{S_B}, s{swave}, 12\ns_add_u32 s{S_B}, s{S_B}, {vbase}\nv_lshlrev_b32 v8, 7, v1\nv_lshl_add_u32 v8, v2, 4, v8\nv_add_u32 v8, s{S_B}, v8")
    g(f"s_mov_b64 exec, s[{mask}:{mask+1}]")
    g("s_nop 5")
    for jp in range(8):
        g(f"ds_write_b128 v8, v[{ACC+4*jp}:{ACC+4*jp+3}] offset:{base+jp*512}")
    g("s_mov_b64 exec, -1")

def rnd2(g,a,b,t):
    g(f"v_cvt_pk_bf16_f32 v{t}, v{a}, v{b}\nv_lshlrev_b32 v{a}, 16, v{t}\nv_and_b32 v{b}, 0xffff0000, v{t}")

def gen(mimic=True, nt="nt", stamps=False, D=4, AH=4, GR=2, DL=8, gpos=1, D2=0):
    g=G()
    hdr=f"""; fused persistent decode kernel: 256 WGs x 8 streaming waves, tagged cross-WG hand-offs
; @launch grid=(256,1,1) block=(512,1,1) lds={LDS_TOTAL}
.amdgcn_target "amdgcn-amd-amdhsa--gfx950"
.text
.globl {KN}
.p2align 8
.type {KN},@function
{KN}:
"""
    stc={'n':0}
    def stamp(always=False):
        if not stamps: return
        if stamps==2 and not always: return
        assert stc['n']<11
        g(f"s_memrealtime s[14:15]\ns_waitcnt lgkmcnt(0)\ns_mov_b32 s{3+stc['n']}, s14"); stc['n']+=1
    def stamp_out(grp):
        if not stamps: return
        L=g.new("Lso")
        g(f"s_cmp_lg_u32 s{S_W4}, 0\ns_cbranch_scc1 {L}")
        g("s_mov_b64 exec, 1")
        g(f"s_lshl_b32 s{S_E}, s2, 7\ns_add_u32 s{S_E}, s{S_E}, {WS_ST+64*grp}\nv_mov_b32 v9, 0")
        for i in range(stc['n']):
            g(f"v_mov_b32 v8, s{3+i}\nbuffer_store_dword v8, v9, s[{R_WS}:{R_WS+3}], s{S_E} offen offset:{4*i}")
        g("s_mov_b64 exec, -1")
        g.label(L)
    g(f"s_cmp_ge_u32 s2, 256\ns_cbranch_scc1 L_end")
    g("s_load_dwordx16 s[16:31], s[0:1], 0\ns_load_dwordx8 s[32:39], s[0:1], 64")
    g(f"v_lshrrev_b32 v1, 6, v0\nv_and_b32 v0, 63, v0\ns_nop 0\nv_readfirstlane_b32 s{S_WAVE}, v1")
    g(f"s_mov_b32 s{S_SELLO}, 0x05040100\ns_mov_b32 s{S_SELHI}, 0x07060302")
    g(f"s_and_b32 s{S_KS}, s2, 3\ns_lshr_b32 s{S_CS}, s2, 2")
    g(f"s_nop 3\ns_and_b32 s{S_W4}, s{S_WAVE}, 3")
    g("v_lshrrev_b32 v1, 4, v0\nv_and_b32 v2, 7, v0\nv_bfe_u32 v3, v0, 3, 1\nv_and_b32 v9, 15, v0")
    g("v_lshlrev_b32 v11, 5, v3\nv_lshl_add_u32 v11, v1, 3, v11")
    g("v_lshlrev_b32 v10, 5, v0")
    g("v_lshlrev_b32 v4, 8, v9\nv_lshl_add_u32 v4, v1, 4, v4")
    g("v_lshlrev_b32 v5, 10, v1\nv_lshl_add_u32 v5, v9, 4, v5")
    g("v_lshlrev_b32 v6, 13, v11\nv_lshl_add_u32 v6, v2, 4, v6")
    g("v_mul_u32_u24 v7, 7168, v11\nv_lshl_add_u32 v7, v2, 4, v7")
    g(f"v_lshrrev_b32 v8, 1, v1\nv_cmp_eq_u32 s[{S_MN}:{S_MN+1}], v3, v8\nv_cmp_eq_u32 s[{S_MW}:{S_MW+1}], 0, v3")
    g(f"s_lshl_b32 s{S_XB}, s{S_WAVE}, 11")
    g("s_waitcnt lgkmcnt(0)")
    srd(g,R_X,P_X,16384)
    g(f"buffer_load_dwordx4 v[16:19], v10, s[{R_X}:{R_X+3}], s{S_XB} offen\nbuffer_load_dwordx4 v[20:23], v10, s[{R_X}:{R_X+3}], s{S_XB} offen offset:16")
    srd(g,R_WS,P_WS,WS_BYTES); srd(g,R_DBG,P_DBG,256); srd(g,R_OUT,P_OUT,16384)
    srd(g,R_K,P_K,33554432); srd(g,R_V,P_V,33554432)
    g(f"s_lshl_b32 s{S_KB}, s2, 17\ns_lshl_b32 s{S_B}, s{S_WAVE}, 14\ns_add_u32 s{S_KB}, s{S_KB}, s{S_B}")
    g(f"s_lshr_b32 s{S_LB}, s2, 3\ns_lshl_b32 s{S_LB}, s{S_LB}, 18\ns_and_b32 s{S_B}, s2, 7\ns_lshl_b32 s{S_B}, s{S_B}, 8\ns_add_u32 s{S_LB}, s{S_LB}, s{S_B}")
    g(f"s_lshl_b32 s{S_B}, s{S_W4}, 16\ns_add_u32 s{S_LB}, s{S_LB}, s{S_B}")
    g(f"s_cmp_ge_u32 s{S_WAVE}, 4\ns_cbranch_scc1 L_g1")

    koffs=lambda t:[t*8192+T*4096+kk*64 for T in range(2) for kk in range(4)]
    voffs=lambda t:[t*8192+j*256 for j in range(4)]+[t*8192+4096+j*256 for j in range(4)]

    def tag4(d, mask=TAGMASK):
        g(f"v_mov_b32 v15, 0x{mask:x}")
        for r in range(4): g(f"v_bfi_b32 v{d+r}, v15, s{S_TAG+r}, v{d+r}")
    def check(regs, acc, t1, t2, mask):
        g(f"v_mov_b32 v{acc}, 0")
        for q in regs:
            for r in (0,2):
                g(f"v_xor_b32 v{t1}, s{S_TAG+r}, v{q+r}\nv_xor_b32 v{t2}, s{S_TAG+r+1}, v{q+r+1}\nv_or3_b32 v{acc}, v{acc}, v{t1}, v{t2}")
        g(f"v_and_b32 v{acc}, {mask}, v{acc}\nv_cmp_ne_u32 vcc, 0, v{acc}")
    def gather_check(wait, items, regs, acc, t1, t2, mask=TAGMASK):
        Lc=g.new("Lchk"); Ld=g.new("Lok")
        g(f"s_mov_b32 s{S_SPIN}, 0")
        wait()
        g.label(Lc)
        check(regs,acc,t1,t2,mask)
        g(f"s_cbranch_vccz {Ld}")
        g(f"s_add_u32 s{S_SPIN}, s{S_SPIN}, 1\ns_cmp_ge_u32 s{S_SPIN}, {SPIN_MAX}\ns_cbranch_scc1 {Ld}")
        g("s_mov_b64 exec, vcc")
        for pre,t in items:
            if pre: g(pre)
            g(t)
        g(f"s_waitcnt vmcnt(0)\ns_mov_b64 exec, -1\ns_branch {Lc}")
        g.label(Ld)
    def sum4(a):
        g(f"v_add_f32 v{a}, v{a}, v{a+4}\nv_add_f32 v{a+8}, v{a+8}, v{a+12}\nv_add_f32 v{a}, v{a}, v{a+8}")
    def write4(a, va, base):
        g(f"v_cvt_pk_bf16_f32 v8, v{a}, v{a+1}\nv_cvt_pk_bf16_f32 v9, v{a+2}, v{a+3}")
        g(f"ds_write_b16 v{va}, v8 offset:{base}\nds_write_b16_d16_hi v{va}, v8 offset:{base+16}\nds_write_b16 v{va}, v9 offset:{base+32}\nds_write_b16_d16_hi v{va}, v9 offset:{base+48}")

    def program(grp):
        st=Stream(g,D,AH,GR); stc['n']=0
        st.n=2; st.total=2; st.m["x"]=2
        stamp(True)
        if grp==0:
            srd(g,R_A,P_WQ,8388608); srd(g,R_B,P_G,7340032); srd(g,R_L,P_D,7340032)
            g(f"s_cmp_ge_u32 s2, 224\ns_cselect_b32 s{R_B+2}, 0, s{R_B+2}\ns_cselect_b32 s{R_L+2}, 0, s{R_L+2}")
        else:
            srd(g,R_A,P_U,7340032); srd(g,R_L,P_WO,8388608)
            g(f"s_cmp_ge_u32 s2, 224\ns_cselect_b32 s{R_A+2}, 0, s{R_A+2}")
            Ln=g.new("Lnoat")
            g(f"s_cmp_lg_u32 s{S_WAVE}, 7\ns_cbranch_scc1 {Ln}\ns_cmp_lg_u32 s2, 0\ns_cbranch_scc1 {Ln}")
            g(f"s_memrealtime s[{S_TAG}:{S_TAG+1}]\ns_waitcnt lgkmcnt(0)\ns_or_b32 s{S_TAG+1}, s{S_TAG+1}, 0x80000000\nv_mov_b32 v28, s{S_TAG}\nv_mov_b32 v29, s{S_TAG+1}\nv_mov_b32 v12, 0\ns_mov_b64 exec, 1")
            g(f"buffer_store_dwordx2 v[28:29], v12, s[{R_DBG}:{R_DBG+3}], 0 offen sc0 sc1\ns_mov_b64 exec, -1")
            g.label(Ln)
        g(f"s_lshl_b32 s{S_A}, s{S_KS}, 8\ns_lshl_b32 s{S_B}, s{S_W4}, 6\ns_add_u32 s{S_A}, s{S_A}, s{S_B}")
        g(f"s_lshl_b32 s{S_C}, s{S_CS}, 7")
        g(f"s_lshl_b32 s{S_AB}, s{S_A}, 13\ns_add_u32 s{S_AB}, s{S_AB}, s{S_C}")
        rot = 2 if grp==0 else 5
        g(f"s_add_u32 s{S_C}, s{S_CS}, {rot}\ns_and_b32 s{S_C}, s{S_C}, 7\ns_and_b32 s{S_D}, s{S_CS}, 0xf8\ns_or_b32 s{S_C}, s{S_C}, s{S_D}\ns_lshl_b32 s{S_C}, s{S_C}, 7")
        g(f"s_mul_i32 s{S_BB}, s{S_A}, 7168\ns_add_u32 s{S_BB}, s{S_BB}, s{S_C}")
        if grp==0:
            g(f"s_lshr_b32 s{S_GB}, s2, 5\ns_lshl_b32 s{S_GB}, s{S_GB}, 14\ns_lshr_b32 s{S_F}, s2, 3\ns_and_b32 s{S_F}, s{S_F}, 3\ns_lshl_b32 s{S_F}, s{S_F}, 12\ns_add_u32 s{S_GB}, s{S_GB}, s{S_F}")
            gitems=[(f"s_add_u32 s{S_T}, s{S_GB}, {WS_QP+ks*131072}", f"buffer_load_dwordx4 v[{UA+4*ks}:{UA+3+4*ks}], v6, s[{R_WS}:{R_WS+3}], s{S_T} offen sc1") for ks in range(4)]
            gregs=[UA+4*i for i in range(4)]
        else:
            g(f"s_lshr_b32 s{S_GB}, s2, 3\ns_lshl_b32 s{S_GB}, s{S_GB}, 9")
            gitems=[(f"s_add_u32 s{S_T}, s{S_GB}, {base+ks*131072}", f"buffer_load_dwordx4 v[{UB+16*m+4*ks}:{UB+3+16*m+4*ks}], v6, s[{R_WS}:{R_WS+3}], s{S_T} offen sc1") for m,base in enumerate((WS_GP,WS_UP)) for ks in range(4)]
            gregs=[UB+4*i for i in range(8)]
        def addg():
            for it in gitems: st.add(*it)
            st.qmark("g1")
        if grp==0:
            unit_loads(st,UA,R_A,6,S_AB,[j*8192 for j in range(8)],nt,"A")
            unit_loads(st,UB,R_B,7,S_BB,[j*7168 for j in range(8)],nt,"B")
        else:
            unit_loads(st,UA,R_A,7,S_BB,[j*7168 for j in range(8)],nt,"A")
        unit_loads(st,KU[0],R_K,4,S_KB,koffs(0),nt,"K0")
        unit_loads(st,KU[1],R_K,4,S_KB,koffs(1),nt,"K1")
        if gpos==0: addg()
        unit_loads(st,VU[0],R_V,5,S_KB,voffs(0),nt,"V0")
        if gpos==1: addg()
        unit_loads(st,VU[1],R_V,5,S_KB,voffs(1),nt,"V1")
        unit_loads(st,UA,R_L,7,S_LB,[j*2048 for j in range(8)],nt,"L")
        st.m["E"]=max(st.m["A"], 2+AH+1)
        st.pump(AH,paced=False)
        g(f"s_waitcnt vmcnt({AH})")
        for i in range(8):
            g(f"v_lshlrev_b32 v{32+2*i}, 16, v{16+i}\nv_and_b32 v{33+2*i}, 0xffff0000, v{16+i}")
        def red64(r,t):
            for m in ("quad_perm:[1,0,3,2]","quad_perm:[2,3,0,1]","row_half_mirror","row_mirror"):
                g(f"s_nop 1\nv_add_f32_dpp v{r}, v{r}, v{r} {m} row_mask:0xf bank_mask:0xf")
            g(f"v_mov_b32 v{t}, v{r}\ns_nop 1\nv_permlane16_swap_b32 v{r}, v{t}\ns_nop 1\nv_add_f32 v{r}, v{r}, v{t}")
            g(f"v_mov_b32 v{t}, v{r}\ns_nop 1\nv_permlane32_swap_b32 v{r}, v{t}\ns_nop 1\nv_add_f32 v{r}, v{r}, v{t}")
        g("v_add_f32 v8, v32, v33")
        for i in range(2,16): g(f"v_add_f32 v8, v8, v{32+i}")
        red64(8,9)
        g("v_mul_f32 v8, 0x3a800000, v8\nv_mov_b32 v13, 0")
        for i in range(16):
            g(f"v_sub_f32 v9, v{32+i}, v8\nv_fmac_f32 v13, v9, v9")
        red64(13,9)
        g("v_mul_f32 v13, 0x3a800000, v13")
        g("v_cvt_pk_bf16_f32 v12, v8, v13\nv_lshlrev_b32 v8, 16, v12\nv_and_b32 v13, 0xffff0000, v12")
        g("v_add_f32 v13, 0x3727c5ac, v13\nv_cvt_pk_bf16_f32 v13, v13, v13\nv_and_b32 v13, 0xffff0000, v13")
        g("v_sqrt_f32 v13, v13\ns_nop 0\nv_cvt_pk_bf16_f32 v13, v13, v13\nv_and_b32 v13, 0xffff0000, v13")
        g("v_rcp_f32 v12, v13\ns_nop 0\nv_fma_f32 v9, -v13, v12, 1.0\nv_fma_f32 v12, v9, v12, v12")
        for i in range(8):
            a=32+2*i
            g(f"v_sub_f32 v{a}, v{a}, v8\nv_sub_f32 v{a+1}, v{a+1}, v8\nv_cvt_pk_bf16_f32 v9, v{a}, v{a+1}")
            g(f"v_lshlrev_b32 v{a}, 16, v9\nv_and_b32 v{a+1}, 0xffff0000, v9")
            g(f"v_mul_f32 v{a}, v{a}, v12\nv_mul_f32 v{a+1}, v{a+1}, v12\nv_cvt_pk_bf16_f32 v{16+i}, v{a}, v{a+1}")
        g(f"v_cmp_eq_u32 vcc, s{S_KS}, v1\nv_and_b32 v9, 15, v0\nv_lshlrev_b32 v9, 5, v9\ns_lshl_b32 s{S_B}, s{S_WAVE}, 9\nv_add_u32 v9, s{S_B}, v9\ns_mov_b64 exec, vcc")
        g(f"ds_write_b128 v9, v[16:19] offset:{LDS_XN}\nds_write_b128 v9, v[20:23] offset:{LDS_XN+16}\ns_mov_b64 exec, -1")
        g(f"v_lshlrev_b32 v8, 9, v2\nv_lshl_add_u32 v8, v11, 1, v8\ns_lshl_b32 s{S_B}, s{S_W4}, 7\nv_add_u32 v8, s{S_B}, v8")
        stamp()
        g("s_waitcnt lgkmcnt(0)\ns_barrier")
        g(f"ds_read_b128 v[{BOP}:{BOP+3}], v8 offset:{LDS_XN}")
        if grp==1:
            Ln=g.new("Lnopl")
            g(f"s_cmp_lg_u32 s{S_WAVE}, 7\ns_cbranch_scc1 {Ln}\nv_mov_b32 v24, 0")
            g(f"buffer_load_dwordx2 v[28:29], v24, s[{R_DBG}:{R_DBG+3}], 0 offen sc0 sc1")
            g.label(Ln)
        st.need("E","lgkmcnt(0)")
        unit_compute(g,UA,BOP,True)
        dump_acc(g,S_MN,S_W4,LDS_DUMP+(0 if grp==0 else 32768))
        if grp==0:
            st.need("B")
            unit_compute(g,UB,BOP,True)
            dump_acc(g,S_MN,S_W4,LDS_DUMP+16384)
        else:
            Ln=g.new("Lnoep")
            g(f"s_cmp_lg_u32 s{S_WAVE}, 7\ns_cbranch_scc1 {Ln}")
            Lc=g.new("Lep"); Ld=g.new("Lepd")
            g(f"s_mov_b32 s{S_SPIN}, 0")
            g.label(Lc)
            g(f"v_readfirstlane_b32 s{S_B}, v29\ns_nop 3\ns_cmp_lt_i32 s{S_B}, 0\ns_cbranch_scc1 {Ld}")
            g(f"s_add_u32 s{S_SPIN}, s{S_SPIN}, 1\ns_cmp_ge_u32 s{S_SPIN}, {SPIN_MAX}\ns_cbranch_scc1 {Ld}")
            g(f"buffer_load_dwordx2 v[28:29], v24, s[{R_DBG}:{R_DBG+3}], 0 offen sc0 sc1\ns_waitcnt vmcnt(0)\ns_branch {Lc}")
            g.label(Ld)
            g(f"v_mov_b32 v8, {LDS_EP}\ns_mov_b64 exec, 1\nds_write_b64 v8, v[28:29]\ns_mov_b64 exec, -1")
            g.label(Ln)
            st.need("K0")
        g(f"s_lshl_b32 s{S_B}, s{S_W4}, 6\nv_add_u32 v12, s{S_B}, v0")
        if grp==0: g("v_lshlrev_b32 v6, 4, v12")
        else: g("v_lshrrev_b32 v6, 5, v12\nv_lshlrev_b32 v6, 14, v6\nv_and_b32 v9, 31, v12\nv_lshl_add_u32 v6, v9, 4, v6")
        g("v_and_b32 v9, 15, v0\nv_lshlrev_b32 v7, 14, v1\nv_lshl_add_u32 v7, v9, 4, v7")
        stamp()
        g("s_waitcnt lgkmcnt(0)\ns_barrier")
        g(f"v_mov_b32 v8, {LDS_EP}\nds_read_b64 v[28:29], v8\ns_waitcnt lgkmcnt(0)\nv_readfirstlane_b32 s{S_A}, v28\nv_readfirstlane_b32 s{S_B}, v29\ns_nop 3")
        g(f"s_and_b32 s{S_TAG}, s{S_A}, {TAGMASK}\ns_bfe_u32 s{S_TAG+1}, s{S_A}, 0xa000a\ns_bfe_u32 s{S_TAG+2}, s{S_A}, 0xa0014")
        g(f"s_lshr_b32 s{S_TAG+3}, s{S_A}, 30\ns_and_b32 s{S_B}, s{S_B}, 0xff\ns_lshl_b32 s{S_B}, s{S_B}, 2\ns_or_b32 s{S_TAG+3}, s{S_TAG+3}, s{S_B}")
        def publish_p1(lo, hi, only224):
            Lsk=g.new("Lsk")
            if only224: g(f"s_cmp_ge_u32 s2, 224\ns_cbranch_scc1 {Lsk}")
            g(f"s_cmp_lt_u32 s{S_WAVE}, {lo}\ns_cbranch_scc1 {Lsk}\ns_cmp_ge_u32 s{S_WAVE}, {hi}\ns_cbranch_scc1 {Lsk}")
            g(f"s_lshr_b32 s{S_A}, s{S_WAVE}, 1\ns_and_b32 s{S_B}, s{S_WAVE}, 1\ns_lshl_b32 s{S_C}, s{S_A}, 14\ns_lshl_b32 s{S_D}, s{S_B}, 9\ns_add_u32 s{S_C}, s{S_C}, s{S_D}")
            g(f"v_lshlrev_b32 v8, 10, v1\nv_lshl_add_u32 v8, v3, 7, v8\nv_lshl_add_u32 v8, v2, 4, v8\nv_add_u32 v8, s{S_C}, v8")
            n=0
            for wv in range(4):
                for e in range(2):
                    g(f"ds_read_b128 v[{32+4*n}:{35+4*n}], v8 offset:{LDS_DUMP+wv*4096+e*256}"); n+=1
            g(f"s_cmp_eq_u32 s{S_A}, 1\ns_cselect_b32 s{S_E}, 2, 0\ns_cmp_eq_u32 s{S_A}, 2\ns_cselect_b32 s{S_E}, 5, s{S_E}\ns_add_u32 s{S_E}, s{S_E}, s{S_CS}\ns_and_b32 s{S_E}, s{S_E}, 7\ns_and_b32 s{S_F}, s{S_CS}, 0xf8\ns_or_b32 s{S_E}, s{S_E}, s{S_F}")
            g(f"s_lshl_b32 s{S_C}, s{S_A}, 19\ns_lshl_b32 s{S_D}, s{S_KS}, 17\ns_add_u32 s{S_C}, s{S_C}, s{S_D}\ns_lshl_b32 s{S_D}, s{S_E}, 8\ns_add_u32 s{S_C}, s{S_C}, s{S_D}\ns_lshl_b32 s{S_D}, s{S_B}, 4\ns_add_u32 s{S_C}, s{S_C}, s{S_D}")
            g("v_lshlrev_b32 v9, 14, v2\nv_lshl_add_u32 v9, v3, 7, v9\nv_lshl_add_u32 v9, v1, 5, v9")
            g("s_waitcnt lgkmcnt(0)")
            for r in range(4):
                g(f"v_add_f32 v{24+r}, v{32+r}, v{36+r}")
                for n in range(2,8): g(f"v_add_f32 v{24+r}, v{24+r}, v{32+4*n+r}")
            tag4(24,0xff)
            g(f"buffer_store_dwordx4 v[24:27], v9, s[{R_WS}:{R_WS+3}], s{S_C} offen sc1")
            g.label(Lsk)
        if grp==0:
            publish_p1(0,2,False); publish_p1(2,4,True)
        else: publish_p1(4,6,True)
        stamp()
        def lds_qh_addr():
            g(f"s_lshl_b32 s{S_B}, s{S_W4}, 6\nv_add_u32 v12, s{S_B}, v0")
            g("v_lshrrev_b32 v14, 4, v12\nv_lshlrev_b32 v14, 7, v14\nv_lshl_add_u32 v14, v3, 6, v14\nv_lshl_add_u32 v14, v2, 1, v14")
        if grp==0:
            gather_check(lambda: st.need("g1"), gitems, gregs, 8, 9, 10, 0xff)
            lds_qh_addr()
            for r in range(4): sum4(UA+r)
            write4(UA,14,LDS_QS)
        else:
            Lskh=g.new("Lskh")
            st.pump(st.m["g1"]+AH-st.n)
            g(f"s_cmp_ge_u32 s2, 224\ns_cbranch_scc1 {Lskh}")
            gather_check(lambda: st.need("g1"), gitems, gregs, 8, 9, 10, 0xff)
            lds_qh_addr()
            H=UB
            for m in range(2):
                for r in range(4): sum4(H+16*m+r)
            rnd2(g,H,H+1,8); rnd2(g,H+2,H+3,8); rnd2(g,H+16,H+17,8); rnd2(g,H+18,H+19,8)
            for r in range(4):
                g(f"v_mul_f32 v{H+r}, 0xbfb8aa3b, v{H+r}\nv_exp_f32 v{H+r}, v{H+r}\ns_nop 0\nv_add_f32 v{H+r}, 1.0, v{H+r}\nv_rcp_f32 v{H+r}, v{H+r}\ns_nop 0")
            rnd2(g,H,H+1,8); rnd2(g,H+2,H+3,8)
            for r in range(4): g(f"v_mul_f32 v{H+r}, v{H+r}, v{H+16+r}")
            write4(H,14,LDS_HS)
            g.label(Lskh)
        if D2: st.D=D2; st.AH=D2; st.pump(D2-AH)
        stamp()
        g("s_waitcnt lgkmcnt(0)\ns_barrier")
        g("v_lshlrev_b32 v8, 8, v2\nv_lshl_add_u32 v8, v1, 4, v8")
        for kk in range(4):
            g(f"ds_read_b128 v[{BOP+4*kk}:{BOP+4*kk+3}], v8 offset:{LDS_QS+kk*64}")
        st.pump(2)
        c=min(63,st.n-st.m["K1"]); g(f"s_waitcnt vmcnt({c}) lgkmcnt(0)")
        for t in range(2):
            u=KU[t]
            for kk in range(4):
                for T in range(2):
                    a=ACC+4*(2*t+T)
                    c="0" if kk==0 else f"v[{a}:{a+3}]"
                    g(f"v_mfma_f32_16x16x32_bf16 v[{a}:{a+3}], v[{u+16*T+4*kk}:{u+16*T+4*kk+3}], v[{BOP+4*kk}:{BOP+4*kk+3}], {c}")
        st.pump(2)
        g("s_nop 7")
        NS=16
        if mimic:
            g(f"s_mov_b32 s{S_A}, 0x3db504f3")
            for i in range(0,NS,2):
                a=ACC+i
                rnd2(g,a,a+1,8)
                g(f"v_mul_f32 v{a}, s{S_A}, v{a}\nv_mul_f32 v{a+1}, s{S_A}, v{a+1}")
                rnd2(g,a,a+1,8)
            g(f"s_mov_b32 s{S_C2}, 0x3fb8aa3b")
        else:
            g(f"s_mov_b32 s{S_C2}, 0x3e0293ee")
        g(f"v_max3_f32 v8, v{ACC}, v{ACC+1}, v{ACC+2}")
        for i in range(3,NS-1,2): g(f"v_max3_f32 v8, v8, v{ACC+i}, v{ACC+i+1}")
        g(f"v_max_f32 v8, v8, v{ACC+NS-1}")
        g("v_mov_b32 v9, v8\ns_nop 1\nv_permlane16_swap_b32 v8, v9\ns_nop 1\nv_max_f32 v8, v8, v9\nv_mov_b32 v9, v8\ns_nop 1\nv_permlane32_swap_b32 v8, v9\ns_nop 1\nv_max_f32 v8, v8, v9")
        g(f"v_mul_f32 v8, s{S_C2}, v8")
        for i in range(NS): g(f"v_fma_f32 v{ACC+i}, v{ACC+i}, s{S_C2}, -v8")
        for i in range(NS): g(f"v_exp_f32 v{ACC+i}, v{ACC+i}")
        g("s_nop 0")
        for i in range(NS//2): g(f"v_cvt_pk_bf16_f32 v{BOP+i}, v{ACC+2*i}, v{ACC+2*i+1}")
        g("v_mov_b32 v9, 0")
        for i in range(NS//2):
            g(f"v_lshlrev_b32 v10, 16, v{BOP+i}\nv_and_b32 v11, 0xffff0000, v{BOP+i}\nv_add_f32 v9, v9, v10\nv_add_f32 v9, v9, v11")
        g("v_mov_b32 v10, v9\ns_nop 1\nv_permlane16_swap_b32 v9, v10\ns_nop 1\nv_add_f32 v9, v9, v10\nv_mov_b32 v10, v9\ns_nop 1\nv_permlane32_swap_b32 v9, v10\ns_nop 1\nv_add_f32 v9, v9, v10")
        g(f"v_lshlrev_b32 v10, 3, v0\ns_lshl_b32 s{S_B}, s{S_WAVE}, 6\nv_add_u32 v10, s{S_B}, v10\ns_mov_b64 exec, 0xff")
        g(f"ds_write_b64 v10, v[8:9] offset:{LDS_MLD}\ns_mov_b64 exec, -1\ns_nop 1")
        stamp()
        st.need("V0"); unit_compute(g,VU[0],BOP,True)
        st.D=DL
        st.need("V1",ah=16); unit_compute(g,VU[1],BOP+4,False)
        assert not st.q
        dump_acc(g,S_MW,S_WAVE,0,LDS_ADUMP)
        stamp()
        g("s_waitcnt lgkmcnt(0)\ns_barrier")
        g(f"s_lshl_b32 s{S_B}, s{S_WAVE}, 3\nv_mov_b32 v8, s{S_B}")
        for wv in range(8): g(f"ds_read_b64 v[{16+2*wv}:{17+2*wv}], v8 offset:{LDS_MLD+64*wv}")
        g(f"v_lshrrev_b32 v9, 5, v0\nv_bfe_u32 v10, v0, 3, 2\nv_lshlrev_b32 v11, 14, v9\nv_lshl_add_u32 v11, v2, 9, v11\nv_lshl_add_u32 v11, v10, 7, v11\ns_lshl_b32 s{S_B}, s{S_WAVE}, 4\ns_add_u32 s{S_B}, s{S_B}, {LDS_ADUMP}\nv_add_u32 v11, s{S_B}, v11")
        for n in range(4): g(f"ds_read_b128 v[{32+4*n}:{35+4*n}], v11 offset:{4096*n}")
        g(f"v_mov_b32 v15, 0x{TAGMASK:x}")
        g("s_waitcnt lgkmcnt(4)")
        g("v_max3_f32 v48, v16, v18, v20\nv_max3_f32 v48, v48, v22, v24\nv_max3_f32 v48, v48, v26, v28\nv_max_f32 v48, v48, v30")
        g(f"v_bfi_b32 v48, v15, s{S_TAG}, v48")
        for wv in range(8): g(f"v_sub_f32 v{52+wv}, v{16+2*wv}, v48\nv_exp_f32 v{52+wv}, v{52+wv}")
        g("s_nop 0\nv_mul_f32 v49, v52, v17")
        for wv in range(1,8): g(f"v_fmac_f32 v49, v{52+wv}, v{17+2*wv}")
        g("v_cmp_lt_u32 vcc, 31, v0\ns_nop 1")
        for n in range(4): g(f"v_cndmask_b32 v{52+n}, v{52+n}, v{56+n}, vcc")
        g("s_waitcnt lgkmcnt(0)")
        for r in range(4):
            g(f"v_mul_f32 v{24+r}, v52, v{32+r}")
            for n in range(1,4): g(f"v_fmac_f32 v{24+r}, v{52+n}, v{32+4*n+r}")
        for r in range(4): g(f"v_mov_b32 v{28+r}, v{24+r}")
        g("s_nop 1")
        for r in range(4): g(f"v_permlane32_swap_b32 v{24+r}, v{28+r}")
        g("s_nop 1")
        for r in range(4): g(f"v_add_f32 v{24+r}, v{24+r}, v{28+r}")
        g("v_cndmask_b32 v24, v24, v48, vcc\nv_cndmask_b32 v25, v25, v49, vcc\nv_cndmask_b32 v26, v26, v48, vcc\nv_cndmask_b32 v27, v27, v49, vcc")
        g("v_lshlrev_b32 v9, 4, v0\nv_min_u32 v9, 512, v9")
        tag4(24)
        g(f"s_lshr_b32 s{S_A}, s2, 3\ns_lshl_b32 s{S_A}, s{S_A}, 3\ns_add_u32 s{S_A}, s{S_A}, s{S_WAVE}\ns_lshl_b32 s{S_A}, s{S_A}, 3\ns_and_b32 s{S_B}, s2, 7\ns_add_u32 s{S_A}, s{S_A}, s{S_B}\ns_mul_i32 s{S_A}, s{S_A}, {APS}\ns_add_u32 s{S_A}, s{S_A}, {WS_AP}")
        g("s_mov_b32 exec_hi, 1")
        st.op(f"buffer_store_dwordx4 v[24:27], v9, s[{R_WS}:{R_WS+3}], s{S_A} offen sc1")
        g("s_mov_b64 exec, -1")
        g(f"v_lshlrev_b32 v6, 8, v2\nv_lshl_add_u32 v6, v1, 4, v6\ns_lshl_b32 s{S_B}, s{S_W4}, 6\nv_add_u32 v6, s{S_B}, v6")
        stamp()
        def pub_quarter(region_base, wsbase):
            g(f"v_lshrrev_b32 v9, 3, v0\nv_lshlrev_b32 v10, 9, v9\nv_lshl_add_u32 v10, v2, 4, v10\ns_lshl_b32 s{S_B}, s{S_W4}, 7\nv_add_u32 v10, s{S_B}, v10")
            for n in range(4): g(f"ds_read_b128 v[{32+4*n}:{35+4*n}], v10 offset:{region_base+4096*n}")
            g(f"v_lshlrev_b32 v11, 12, v2\nv_lshl_add_u32 v11, v9, 4, v11")
            g(f"s_lshr_b32 s{S_E}, s2, 3\ns_lshl_b32 s{S_E}, s{S_E}, 15\ns_and_b32 s{S_F}, s2, 7\ns_lshl_b32 s{S_F}, s{S_F}, 9\ns_add_u32 s{S_E}, s{S_E}, s{S_F}\ns_add_u32 s{S_E}, s{S_E}, s{S_B}\ns_add_u32 s{S_E}, s{S_E}, {wsbase}")
            g("s_waitcnt lgkmcnt(0)")
            for r in range(4): g(f"v_add_f32 v{24+r}, v{32+r}, v{36+r}\nv_add_f32 v{28+r}, v{40+r}, v{44+r}\nv_add_f32 v{24+r}, v{24+r}, v{28+r}")
            tag4(24)
            g(f"buffer_store_dwordx4 v[24:27], v11, s[{R_WS}:{R_WS+3}], s{S_E} offen sc1")
        if grp==0:
            g(f"ds_read_b128 v[{BOP}:{BOP+3}], v6 offset:{LDS_HS}")
            st.need("L","lgkmcnt(0)")
            unit_compute(g,UA,BOP,True)
            dump_acc(g,S_MW,S_W4,LDS_DUMP+32768)
            g("s_waitcnt lgkmcnt(0)\ns_barrier")
            Ls=g.new("Lsd")
            g(f"s_cmp_ge_u32 s2, 224\ns_cbranch_scc1 {Ls}")
            pub_quarter(LDS_DUMP+32768, WS_DP)
            g.label(Ls)
            g(f"s_cmp_lg_u32 s{S_WAVE}, 0\ns_cbranch_scc1 L_b6only")
            g(f"s_lshr_b32 s{S_A}, s2, 5\ns_lshl_b32 s{S_A}, s{S_A}, 11\ns_and_b32 s{S_B}, s2, 7\ns_lshl_b32 s{S_B}, s{S_B}, 8\ns_add_u32 s{S_A}, s{S_A}, s{S_B}\ns_lshr_b32 s{S_B}, s2, 3\ns_and_b32 s{S_B}, s{S_B}, 3\ns_lshl_b32 s{S_B}, s{S_B}, 6\ns_add_u32 s{S_KB}, s{S_A}, s{S_B}")
            g("v_lshlrev_b32 v11, 1, v2")
            for r in range(4): g(f"buffer_load_ushort v{60+r}, v11, s[{R_X}:{R_X+3}], s{S_KB} offen offset:{16*r}")
            g(f"v_lshrrev_b32 v5, 3, v0\nv_lshlrev_b32 v6, 15, v5\nv_lshl_add_u32 v6, v2, 4, v6\ns_lshl_b32 s{S_E}, s{S_KB}, 1")
            g("v_cmp_gt_u32 vcc, 4, v5\nv_subrev_u32 v7, 0x20000, v6\ns_nop 1\nv_cndmask_b32 v7, v7, v6, vcc\nv_cndmask_b32 v13, 0, 1.0, vcc")
            stamp()
            g("s_barrier")
            fitems=[(f"s_add_u32 s{S_F}, s{S_E}, {WS_SP+i*262144}", f"buffer_load_dwordx4 v[{16+4*i}:{19+4*i}], v6, s[{R_WS}:{R_WS+3}], s{S_F} offen sc1") for i in range(4)]
            fitems+=[(f"s_add_u32 s{S_F}, s{S_E}, {WS_DP+i*262144}", f"buffer_load_dwordx4 v[{32+4*i}:{35+4*i}], v{7 if i==3 else 6}, s[{R_WS}:{R_WS+3}], s{S_F} offen sc1") for i in range(4)]
            for pre,t in fitems: g(pre); g(t)
            gather_check(lambda: g("s_waitcnt vmcnt(0)"), fitems, [16+4*i for i in range(8)], 8,9,10)
            stamp()
            for r in range(4): g(f"v_mul_f32 v{44+r}, v{44+r}, v13")
            for m in range(2):
                for r in range(4): sum4(16+16*m+r)
            regs=[16,17,18,19,32,33,34,35]
            g("s_nop 1")
            for r in regs: g(f"v_add_f32_dpp v{r}, v{r}, v{r} row_ror:8 row_mask:0xf bank_mask:0xf")
            for r in regs: g(f"v_mov_b32 v{r+4}, v{r}")
            g("s_nop 1")
            for r in regs: g(f"v_permlane16_swap_b32 v{r}, v{r+4}")
            g("s_nop 1")
            for r in regs: g(f"v_add_f32 v{r}, v{r}, v{r+4}")
            for r in regs: g(f"v_mov_b32 v{r+4}, v{r}")
            g("s_nop 1")
            for r in regs: g(f"v_permlane32_swap_b32 v{r}, v{r+4}")
            g("s_nop 1")
            for r in regs: g(f"v_add_f32 v{r}, v{r}, v{r+4}")
            rnd2(g,16,17,5); rnd2(g,18,19,5); rnd2(g,32,33,5); rnd2(g,34,35,5)
            for r in range(4):
                g(f"v_mul_f32 v{20+r}, 0xbfb8aa3b, v{32+r}\nv_exp_f32 v{20+r}, v{20+r}\ns_nop 0\nv_add_f32 v{20+r}, 1.0, v{20+r}\nv_rcp_f32 v{20+r}, v{20+r}\ns_nop 0\nv_mul_f32 v{32+r}, v{32+r}, v{20+r}")
            rnd2(g,32,33,5); rnd2(g,34,35,5)
            for r in range(4): g(f"v_mul_f32 v{16+r}, v{16+r}, v{32+r}")
            rnd2(g,16,17,5); rnd2(g,18,19,5)
            for r in range(4): g(f"v_lshlrev_b32 v{60+r}, 16, v{60+r}\nv_add_f32 v{16+r}, v{16+r}, v{60+r}")
            g("v_cvt_pk_bf16_f32 v20, v16, v17\nv_cvt_pk_bf16_f32 v21, v18, v19")
            g("s_mov_b64 exec, 0xff")
            g(f"buffer_store_short v20, v11, s[{R_OUT}:{R_OUT+3}], s{S_KB} offen\nbuffer_store_short_d16_hi v20, v11, s[{R_OUT}:{R_OUT+3}], s{S_KB} offen offset:16")
            g(f"buffer_store_short v21, v11, s[{R_OUT}:{R_OUT+3}], s{S_KB} offen offset:32\nbuffer_store_short_d16_hi v21, v11, s[{R_OUT}:{R_OUT+3}], s{S_KB} offen offset:48")
            g("s_mov_b64 exec, -1")
            stamp(True)
            stamp_out(0)
            g("s_endpgm")
        else:
            g(f"s_lshl_b32 s{S_B}, s{S_W4}, 6\nv_add_u32 v12, s{S_B}, v0")
            g(f"v_lshrrev_b32 v9, 5, v12\nv_and_b32 v10, 31, v12\ns_mov_b32 s{S_A}, {32*8*APS}\nv_mul_lo_u32 v13, v9, s{S_A}\nv_add_u32 v14, 512, v13\nv_lshl_add_u32 v13, v10, 4, v13")
            g(f"s_lshr_b32 s{S_E}, s2, 3\ns_mul_i32 s{S_E}, s{S_E}, {8*APS}\ns_add_u32 s{S_E}, s{S_E}, {WS_AP}")
            oitems=[(None,f"buffer_load_dwordx4 v[{96+4*sp}:{99+4*sp}], v14, s[{R_WS}:{R_WS+3}], s{S_E} offen offset:{APS*sp} sc1") for sp in range(8)]
            oitems+=[(None,f"buffer_load_dwordx4 v[{32+4*sp}:{35+4*sp}], v13, s[{R_WS}:{R_WS+3}], s{S_E} offen offset:{APS*sp} sc1") for sp in range(8)]
            for pre,t in oitems: g(t)
            g("v_bfe_u32 v10, v0, 3, 2\nv_lshlrev_b32 v11, 8, v9\nv_lshl_add_u32 v11, v10, 6, v11\nv_lshl_add_u32 v11, v2, 1, v11")
            gather_check(lambda: g("s_waitcnt vmcnt(0)"), oitems, [96+4*i for i in range(8)]+[32+4*i for i in range(8)],8,9,10)
            stamp()
            g("v_max3_f32 v16, v96, v100, v104\nv_max3_f32 v16, v16, v108, v112\nv_max3_f32 v16, v16, v116, v120\nv_max_f32 v16, v16, v124")
            for sp in range(8): g(f"v_sub_f32 v{24+sp}, v{96+4*sp}, v16\nv_exp_f32 v{24+sp}, v{24+sp}")
            g("s_nop 0\nv_mul_f32 v17, v24, v97")
            for sp in range(1,8): g(f"v_fmac_f32 v17, v{24+sp}, v{97+4*sp}")
            g("v_rcp_f32 v18, v17\ns_nop 0\nv_fma_f32 v19, -v17, v18, 1.0\nv_fma_f32 v18, v19, v18, v18")
            for r in range(4):
                g(f"v_mul_f32 v{20+r}, v24, v{32+r}")
                for sp in range(1,8): g(f"v_fmac_f32 v{20+r}, v{24+sp}, v{32+4*sp+r}")
                g(f"v_mul_f32 v{20+r}, v{20+r}, v18")
            write4(20,11,LDS_OS)
            g("s_waitcnt lgkmcnt(0)\ns_barrier")
            g(f"ds_read_b128 v[{BOP}:{BOP+3}], v6 offset:{LDS_OS}")
            g("s_waitcnt vmcnt(0) lgkmcnt(0)")
            unit_compute(g,UA,BOP,True)
            dump_acc(g,S_MW,S_W4,LDS_DUMP)
            g("s_waitcnt lgkmcnt(0)\ns_barrier")
            pub_quarter(LDS_DUMP, WS_SP)
            stamp(True)
            stamp_out(1)
            g("s_endpgm")
    program(0)
    g.label("L_g1")
    program(1)
    g.label("L_b6only")
    g("s_barrier")
    g.label("L_end")
    g("s_endpgm")
    tail=f""".section .rodata,"a"
.p2align 6
.amdhsa_kernel {KN}
  .amdhsa_next_free_vgpr 256
  .amdhsa_next_free_sgpr 102
  .amdhsa_accum_offset 256
  .amdhsa_group_segment_fixed_size 0
  .amdhsa_kernarg_size 96
  .amdhsa_user_sgpr_count 2
  .amdhsa_user_sgpr_kernarg_segment_ptr 1
  .amdhsa_system_sgpr_workgroup_id_x 1
.end_amdhsa_kernel
"""
    return hdr+g.text()+tail

if __name__=="__main__":
    out = sys.argv[1] if len(sys.argv)>1 else "recurrent_scan__gqa_block_cached__glu_gated_glu__decode.s"
    kw={}
    for a in sys.argv[2:]:
        if a=="stamps": kw["stamps"]=1
        elif a=="lite": kw["stamps"]=2
        elif "=" in a:
            k,v=a.split("="); kw[k]=int(v)
    open(out,"w").write(gen(**kw))
```

```python
import sys
KN="recurrent_scan__gqa_block_cached__glu_gated_glu__decode_kernel"

class G:
    def __init__(s): s.o=[]; s.lbl=0
    def __call__(s, t):
        for line in t.strip("\n").split("\n"):
            s.o.append("    "+line.strip())
    def label(s, n): s.o.append(n+":")
    def new(s, p="L"):
        s.lbl+=1; return f"{p}_{s.lbl}"
    def text(s): return "\n".join(s.o)+"\n"

LDS_DUMP=0; LDS_XN=49152; LDS_QS=53248; LDS_HS=55296; LDS_OS=57344; LDS_MLD=59392; LDS_EP=59904
LDS_ADUMP=61440
LDS_TOTAL=61440+32768
WS_QP=0; WS_GP=0x80000; WS_UP=0x100000; WS_AP=0x200000; WS_SP=0x400000; WS_DP=0x500000; WS_ST=0x600000
APS=576
WS_BYTES=268435456
SPIN_MAX=100000
TAGBITS=10; TAGMASK=(1<<TAGBITS)-1; NTAG=(~TAGMASK)&0xffffffff

P_X=16;P_K=18;P_V=20;P_WQ=22;P_WO=24;P_BX=26;P_G=28;P_U=30;P_D=32;P_OUT=34;P_DBG=36;P_WS=38
R_K=40;R_V=44;R_A=48;R_B=52;R_L=56;R_X=60;R_WS=64;R_DBG=68;R_OUT=72
S_WAVE=76; S_T=77; S_SELLO=78; S_SELHI=79; S_KS=80; S_CS=81
S_A=82;S_B=83;S_C=84;S_D=85;S_E=86;S_F=87;S_SPIN=88;S_KB=89;S_LB=90;S_C2=91
S_TAG=92; S_MN=96; S_MW=98; S_W4=100; S_XB=101
S_AB=16; S_BB=17; S_GB=18
ACC=32; BOP=16; TA=8; TB=12
UA=64; UB=96; KU=[128,160]; VU=[192,224]

def srd(g, r, p, nbytes):
    g(f"s_mov_b32 s{r}, s{p}\ns_and_b32 s{r+1}, s{p+1}, 0xffff\ns_mov_b32 s{r+2}, {nbytes}\ns_mov_b32 s{r+3}, 0x20000")

class Stream:
    def __init__(s,g,D,AH,GR=2): s.g=g; s.n=0; s.q=[]; s.D=D; s.AH=AH; s.GR=GR; s.m={}; s.total=0
    def add(s,pre,text): s.q.append((pre,text)); s.total+=1
    def qmark(s,name): s.m[name]=s.total
    def op(s,text):
        assert not s.q
        s.g(text); s.n+=1; s.total+=1
    def pump(s,k,paced=True):
        k=min(k,len(s.q)); i=0
        while i<k:
            c=min(s.GR,k-i)
            if paced and s.n > s.D-c: s.g(f"s_waitcnt vmcnt({s.D-c})")
            for _ in range(c):
                pre,text=s.q.pop(0)
                if pre: s.g(pre)
                s.g(text); s.n+=1
            i+=c
    def need(s,name,extra="",ah=None):
        tgt=s.m[name]; ah=s.AH if ah is None else ah
        s.pump(max(0,tgt+ah-s.n))
        c=min(63,s.n-tgt); s.g(f"s_waitcnt vmcnt({c}) {extra}")

def unit_loads(st, dst, rsrd, vaddr, sbase, offs, flags, name):
    for j,off in enumerate(offs):
        hi=off & ~0xfff; lo=off & 0xfff
        if hi==0: pre=None; sreg=f"s{sbase}"
        else: pre=f"s_add_u32 s{S_T}, s{sbase}, {hi}"; sreg=f"s{S_T}"
        st.add(pre,f"buffer_load_dwordx4 v[{dst+4*j}:{dst+4*j+3}], v{vaddr}, s[{rsrd}:{rsrd+3}], {sreg} offen offset:{lo} {flags}")
    st.qmark(name)

def unit_compute(g, u, bop, first):
    def perms(t, jp):
        q=jp>>1; sel=S_SELHI if jp&1 else S_SELLO
        for i in range(4):
            g(f"v_perm_b32 v{t+i}, v{u+4*(2*i+1)+q}, v{u+4*(2*i)+q}, s{sel}")
    def mf(t, jp):
        c = "0" if first else f"v[{ACC+4*jp}:{ACC+4*jp+3}]"
        g(f"v_mfma_f32_16x16x32_bf16 v[{ACC+4*jp}:{ACC+4*jp+3}], v[{t}:{t+3}], v[{bop}:{bop+3}], {c}")
    T=[TA,TB]
    perms(T[0],0)
    for jp in range(8):
        if jp<7: perms(T[(jp+1)&1], jp+1)
        else: g("s_nop 1")
        mf(T[jp&1], jp)

def dump_acc(g, mask, swave, base, vbase=0):
    g(f"s_lshl_b32 s{S_B}, s{swave}, 12\ns_add_u32 s{S_B}, s{S_B}, {vbase}\nv_lshlrev_b32 v8, 7, v1\nv_lshl_add_u32 v8, v2, 4, v8\nv_add_u32 v8, s{S_B}, v8")
    g(f"s_mov_b64 exec, s[{mask}:{mask+1}]")
    g("s_nop 5")
    for jp in range(8):
        g(f"ds_write_b128 v8, v[{ACC+4*jp}:{ACC+4*jp+3}] offset:{base+jp*512}")
    g("s_mov_b64 exec, -1")

def rnd2(g,a,b,t):
    g(f"v_cvt_pk_bf16_f32 v{t}, v{a}, v{b}\nv_lshlrev_b32 v{a}, 16, v{t}\nv_and_b32 v{b}, 0xffff0000, v{t}")

def gen(mimic=True, nt="nt", stamps=False, D=4, AH=4, GR=2, DL=8, gpos=1, D2=0, SL1=4, SL2=2):
    g=G()
    hdr=f"""; fused persistent decode kernel: 256 WGs x 8 streaming waves, tagged cross-WG hand-offs
; @launch grid=(256,1,1) block=(512,1,1) lds={LDS_TOTAL}
.amdgcn_target "amdgcn-amd-amdhsa--gfx950"
.text
.globl {KN}
.p2align 8
.type {KN},@function
{KN}:
"""
    stc={'n':0}
    def stamp(always=False):
        if not stamps: return
        if stamps>=2 and not always: return
        assert stc['n']<11
        g(f"s_memrealtime s[14:15]\ns_waitcnt lgkmcnt(0)\ns_mov_b32 s{3+stc['n']}, s14"); stc['n']+=1
    def stamp_out(grp):
        if not stamps: return
        if stamps==3:
            if grp==1: return
            g("s_mov_b64 exec, 1\ns_not_b32 s3, s3\nv_mov_b32 v8, s3\nv_mov_b32 v10, s4\nv_mov_b32 v9, 0")
            g(f"buffer_atomic_umax v8, v9, s[{R_DBG}:{R_DBG+3}], 0 offen offset:16\nbuffer_atomic_umax v10, v9, s[{R_DBG}:{R_DBG+3}], 0 offen offset:20\ns_mov_b64 exec, -1")
            return
        L=g.new("Lso")
        g(f"s_cmp_lg_u32 s{S_W4}, 0\ns_cbranch_scc1 {L}")
        g("s_mov_b64 exec, 1")
        g(f"s_lshl_b32 s{S_E}, s2, 7\ns_add_u32 s{S_E}, s{S_E}, {WS_ST+64*grp}\nv_mov_b32 v9, 0")
        for i in range(stc['n']):
            g(f"v_mov_b32 v8, s{3+i}\nbuffer_store_dword v8, v9, s[{R_WS}:{R_WS+3}], s{S_E} offen offset:{4*i}")
        g("s_mov_b64 exec, -1")
        g.label(L)
    g(f"s_cmp_ge_u32 s2, 256\ns_cbranch_scc1 L_end")
    g("s_load_dwordx16 s[16:31], s[0:1], 0\ns_load_dwordx8 s[32:39], s[0:1], 64")
    g(f"v_lshrrev_b32 v1, 6, v0\nv_and_b32 v0, 63, v0\ns_nop 0\nv_readfirstlane_b32 s{S_WAVE}, v1")
    g(f"s_mov_b32 s{S_SELLO}, 0x05040100\ns_mov_b32 s{S_SELHI}, 0x07060302")
    g(f"s_and_b32 s{S_KS}, s2, 3\ns_lshr_b32 s{S_CS}, s2, 2")
    g(f"s_nop 3\ns_and_b32 s{S_W4}, s{S_WAVE}, 3")
    g("v_lshrrev_b32 v1, 4, v0\nv_and_b32 v2, 7, v0\nv_bfe_u32 v3, v0, 3, 1\nv_and_b32 v9, 15, v0")
    g("v_lshlrev_b32 v11, 5, v3\nv_lshl_add_u32 v11, v1, 3, v11")
    g("v_lshlrev_b32 v10, 5, v0")
    g("v_lshlrev_b32 v4, 8, v9\nv_lshl_add_u32 v4, v1, 4, v4")
    g("v_lshlrev_b32 v5, 10, v1\nv_lshl_add_u32 v5, v9, 4, v5")
    g("v_lshlrev_b32 v6, 13, v11\nv_lshl_add_u32 v6, v2, 4, v6")
    g("v_mul_u32_u24 v7, 7168, v11\nv_lshl_add_u32 v7, v2, 4, v7")
    g(f"v_lshrrev_b32 v8, 1, v1\nv_cmp_eq_u32 s[{S_MN}:{S_MN+1}], v3, v8\nv_cmp_eq_u32 s[{S_MW}:{S_MW+1}], 0, v3")
    g(f"s_lshl_b32 s{S_XB}, s{S_WAVE}, 11")
    g("s_waitcnt lgkmcnt(0)")
    srd(g,R_X,P_X,16384)
    g(f"buffer_load_dwordx4 v[16:19], v10, s[{R_X}:{R_X+3}], s{S_XB} offen\nbuffer_load_dwordx4 v[20:23], v10, s[{R_X}:{R_X+3}], s{S_XB} offen offset:16")
    srd(g,R_WS,P_WS,WS_BYTES); srd(g,R_DBG,P_DBG,256); srd(g,R_OUT,P_OUT,16384)
    srd(g,R_K,P_K,33554432); srd(g,R_V,P_V,33554432)
    g(f"s_lshl_b32 s{S_KB}, s2, 17\ns_lshl_b32 s{S_B}, s{S_WAVE}, 14\ns_add_u32 s{S_KB}, s{S_KB}, s{S_B}")
    g(f"s_lshr_b32 s{S_LB}, s2, 3\ns_lshl_b32 s{S_LB}, s{S_LB}, 18\ns_and_b32 s{S_B}, s2, 7\ns_lshl_b32 s{S_B}, s{S_B}, 8\ns_add_u32 s{S_LB}, s{S_LB}, s{S_B}")
    g(f"s_lshl_b32 s{S_B}, s{S_W4}, 16\ns_add_u32 s{S_LB}, s{S_LB}, s{S_B}")
    g(f"s_cmp_ge_u32 s{S_WAVE}, 4\ns_cbranch_scc1 L_g1")

    koffs=lambda t:[t*8192+T*4096+kk*64 for T in range(2) for kk in range(4)]
    voffs=lambda t:[t*8192+j*256 for j in range(4)]+[t*8192+4096+j*256 for j in range(4)]

    def tag4(d, mask=TAGMASK):
        g(f"v_mov_b32 v15, 0x{mask:x}")
        for r in range(4): g(f"v_bfi_b32 v{d+r}, v15, s{S_TAG+r}, v{d+r}")
    def check(regs, acc, t1, t2, mask):
        g(f"v_mov_b32 v{acc}, 0")
        for q in regs:
            for r in (0,2):
                g(f"v_xor_b32 v{t1}, s{S_TAG+r}, v{q+r}\nv_xor_b32 v{t2}, s{S_TAG+r+1}, v{q+r+1}\nv_or3_b32 v{acc}, v{acc}, v{t1}, v{t2}")
        g(f"v_and_b32 v{acc}, {mask}, v{acc}\nv_cmp_ne_u32 vcc, 0, v{acc}")
    def gather_check(wait, items, regs, acc, t1, t2, mask=TAGMASK):
        Lc=g.new("Lchk"); Ld=g.new("Lok")
        g(f"s_mov_b32 s{S_SPIN}, 0")
        wait()
        g.label(Lc)
        check(regs,acc,t1,t2,mask)
        g(f"s_cbranch_vccz {Ld}")
        g(f"s_add_u32 s{S_SPIN}, s{S_SPIN}, 1\ns_cmp_ge_u32 s{S_SPIN}, {SPIN_MAX}\ns_cbranch_scc1 {Ld}")
        g("s_mov_b64 exec, vcc")
        for pre,t in items:
            if pre: g(pre)
            g(t)
        g(f"s_waitcnt vmcnt(0)\ns_mov_b64 exec, -1\ns_branch {Lc}")
        g.label(Ld)
    def masked_gather(groups, acc, t1, t2, sleep, first_wait="s_waitcnt vmcnt(0)", mid=None):
        Ll=g.new("Lmg"); Ld=g.new("Lmgd")
        for items,quads in groups:
            for pre,t in items:
                if pre: g(pre)
                g(t)
        if mid: mid()
        g(f"s_mov_b32 s{S_SPIN}, 0")
        g(first_wait)
        g.label(Ll)
        for i,(items,quads) in enumerate(groups):
            check(quads,acc,t1,t2,TAGMASK)
            g(f"s_nop 0\ns_mov_b64 s[{20+2*i}:{21+2*i}], vcc")
        g("s_or_b64 vcc, s[20:21], s[22:23]")
        for i in range(2,len(groups)): g(f"s_or_b64 vcc, vcc, s[{20+2*i}:{21+2*i}]")
        g(f"s_cbranch_scc0 {Ld}")
        g(f"s_add_u32 s{S_SPIN}, s{S_SPIN}, 1\ns_cmp_ge_u32 s{S_SPIN}, {SPIN_MAX}\ns_cbranch_scc1 {Ld}")
        if sleep: g(f"s_sleep {sleep}")
        for i,(items,quads) in enumerate(groups):
            Ls=g.new("Lmgs")
            g(f"s_mov_b64 exec, s[{20+2*i}:{21+2*i}]\ns_cbranch_execz {Ls}")
            for pre,t in items:
                if pre: g(pre)
                g(t)
            g.label(Ls)
        g(f"s_mov_b64 exec, -1\ns_waitcnt vmcnt(0)\ns_branch {Ll}")
        g.label(Ld)
    def sum4(a):
        g(f"v_add_f32 v{a}, v{a}, v{a+4}\nv_add_f32 v{a+8}, v{a+8}, v{a+12}\nv_add_f32 v{a}, v{a}, v{a+8}")
    def write4(a, va, base):
        g(f"v_cvt_pk_bf16_f32 v8, v{a}, v{a+1}\nv_cvt_pk_bf16_f32 v9, v{a+2}, v{a+3}")
        g(f"ds_write_b16 v{va}, v8 offset:{base}\nds_write_b16_d16_hi v{va}, v8 offset:{base+16}\nds_write_b16 v{va}, v9 offset:{base+32}\nds_write_b16_d16_hi v{va}, v9 offset:{base+48}")

    def program(grp):
        st=Stream(g,D,AH,GR); stc['n']=0
        st.n=2; st.total=2; st.m["x"]=2
        stamp(True)
        if grp==0:
            srd(g,R_A,P_WQ,8388608); srd(g,R_B,P_G,7340032); srd(g,R_L,P_D,7340032)
            g(f"s_cmp_ge_u32 s2, 224\ns_cselect_b32 s{R_B+2}, 0, s{R_B+2}\ns_cselect_b32 s{R_L+2}, 0, s{R_L+2}")
        else:
            srd(g,R_A,P_U,7340032); srd(g,R_L,P_WO,8388608)
            g(f"s_cmp_ge_u32 s2, 224\ns_cselect_b32 s{R_A+2}, 0, s{R_A+2}")
            Ln=g.new("Lnoat")
            g(f"s_cmp_lg_u32 s{S_WAVE}, 7\ns_cbranch_scc1 {Ln}\ns_cmp_lg_u32 s2, 0\ns_cbranch_scc1 {Ln}")
            g(f"s_memrealtime s[{S_TAG}:{S_TAG+1}]\ns_waitcnt lgkmcnt(0)\ns_or_b32 s{S_TAG+1}, s{S_TAG+1}, 0x80000000\nv_mov_b32 v28, s{S_TAG}\nv_mov_b32 v29, s{S_TAG+1}\nv_mov_b32 v12, 0\ns_mov_b64 exec, 1")
            g(f"buffer_store_dwordx2 v[28:29], v12, s[{R_DBG}:{R_DBG+3}], 0 offen sc0 sc1\ns_mov_b64 exec, -1")
            g.label(Ln)
        g(f"s_lshl_b32 s{S_A}, s{S_KS}, 8\ns_lshl_b32 s{S_B}, s{S_W4}, 6\ns_add_u32 s{S_A}, s{S_A}, s{S_B}")
        g(f"s_lshl_b32 s{S_C}, s{S_CS}, 7")
        g(f"s_lshl_b32 s{S_AB}, s{S_A}, 13\ns_add_u32 s{S_AB}, s{S_AB}, s{S_C}")
        rot = 2 if grp==0 else 5
        g(f"s_add_u32 s{S_C}, s{S_CS}, {rot}\ns_and_b32 s{S_C}, s{S_C}, 7\ns_and_b32 s{S_D}, s{S_CS}, 0xf8\ns_or_b32 s{S_C}, s{S_C}, s{S_D}\ns_lshl_b32 s{S_C}, s{S_C}, 7")
        g(f"s_mul_i32 s{S_BB}, s{S_A}, 7168\ns_add_u32 s{S_BB}, s{S_BB}, s{S_C}")
        if grp==0:
            g(f"s_lshr_b32 s{S_GB}, s2, 5\ns_lshl_b32 s{S_GB}, s{S_GB}, 14\ns_lshr_b32 s{S_F}, s2, 3\ns_and_b32 s{S_F}, s{S_F}, 3\ns_lshl_b32 s{S_F}, s{S_F}, 12\ns_add_u32 s{S_GB}, s{S_GB}, s{S_F}")
            gitems=[(f"s_add_u32 s{S_T}, s{S_GB}, {WS_QP+ks*131072}", f"buffer_load_dwordx4 v[{UA+4*ks}:{UA+3+4*ks}], v6, s[{R_WS}:{R_WS+3}], s{S_T} offen sc1") for ks in range(4)]
            gregs=[UA+4*i for i in range(4)]
        else:
            g(f"s_lshr_b32 s{S_GB}, s2, 3\ns_lshl_b32 s{S_GB}, s{S_GB}, 9")
            gitems=[(f"s_add_u32 s{S_T}, s{S_GB}, {base+ks*131072}", f"buffer_load_dwordx4 v[{UB+16*m+4*ks}:{UB+3+16*m+4*ks}], v6, s[{R_WS}:{R_WS+3}], s{S_T} offen sc1") for m,base in enumerate((WS_GP,WS_UP)) for ks in range(4)]
            gregs=[UB+4*i for i in range(8)]
        def addg():
            for it in gitems: st.add(*it)
            st.qmark("g1")
        if grp==0:
            unit_loads(st,UA,R_A,6,S_AB,[j*8192 for j in range(8)],nt,"A")
            unit_loads(st,UB,R_B,7,S_BB,[j*7168 for j in range(8)],nt,"B")
        else:
            unit_loads(st,UA,R_A,7,S_BB,[j*7168 for j in range(8)],nt,"A")
        unit_loads(st,KU[0],R_K,4,S_KB,koffs(0),nt,"K0")
        unit_loads(st,KU[1],R_K,4,S_KB,koffs(1),nt,"K1")
        if gpos==0: addg()
        unit_loads(st,VU[0],R_V,5,S_KB,voffs(0),nt,"V0")
        if gpos==1: addg()
        unit_loads(st,VU[1],R_V,5,S_KB,voffs(1),nt,"V1")
        unit_loads(st,UA,R_L,7,S_LB,[j*2048 for j in range(8)],nt,"L")
        st.m["E"]=max(st.m["A"], 2+AH+1)
        st.pump(AH,paced=False)
        g(f"s_waitcnt vmcnt({AH})")
        for i in range(8):
            g(f"v_lshlrev_b32 v{32+2*i}, 16, v{16+i}\nv_and_b32 v{33+2*i}, 0xffff0000, v{16+i}")
        def red64(r,t):
            for m in ("quad_perm:[1,0,3,2]","quad_perm:[2,3,0,1]","row_half_mirror","row_mirror"):
                g(f"s_nop 1\nv_add_f32_dpp v{r}, v{r}, v{r} {m} row_mask:0xf bank_mask:0xf")
            g(f"v_mov_b32 v{t}, v{r}\ns_nop 1\nv_permlane16_swap_b32 v{r}, v{t}\ns_nop 1\nv_add_f32 v{r}, v{r}, v{t}")
            g(f"v_mov_b32 v{t}, v{r}\ns_nop 1\nv_permlane32_swap_b32 v{r}, v{t}\ns_nop 1\nv_add_f32 v{r}, v{r}, v{t}")
        g("v_add_f32 v8, v32, v33")
        for i in range(2,16): g(f"v_add_f32 v8, v8, v{32+i}")
        red64(8,9)
        g("v_mul_f32 v8, 0x3a800000, v8\nv_mov_b32 v13, 0")
        for i in range(16):
            g(f"v_sub_f32 v9, v{32+i}, v8\nv_fmac_f32 v13, v9, v9")
        red64(13,9)
        g("v_mul_f32 v13, 0x3a800000, v13")
        g("v_cvt_pk_bf16_f32 v12, v8, v13\nv_lshlrev_b32 v8, 16, v12\nv_and_b32 v13, 0xffff0000, v12")
        g("v_add_f32 v13, 0x3727c5ac, v13\nv_cvt_pk_bf16_f32 v13, v13, v13\nv_and_b32 v13, 0xffff0000, v13")
        g("v_sqrt_f32 v13, v13\ns_nop 0\nv_cvt_pk_bf16_f32 v13, v13, v13\nv_and_b32 v13, 0xffff0000, v13")
        g("v_rcp_f32 v12, v13\ns_nop 0\nv_fma_f32 v9, -v13, v12, 1.0\nv_fma_f32 v12, v9, v12, v12")
        for i in range(8):
            a=32+2*i
            g(f"v_sub_f32 v{a}, v{a}, v8\nv_sub_f32 v{a+1}, v{a+1}, v8\nv_cvt_pk_bf16_f32 v9, v{a}, v{a+1}")
            g(f"v_lshlrev_b32 v{a}, 16, v9\nv_and_b32 v{a+1}, 0xffff0000, v9")
            g(f"v_mul_f32 v{a}, v{a}, v12\nv_mul_f32 v{a+1}, v{a+1}, v12\nv_cvt_pk_bf16_f32 v{16+i}, v{a}, v{a+1}")
        g(f"v_cmp_eq_u32 vcc, s{S_KS}, v1\nv_and_b32 v9, 15, v0\nv_lshlrev_b32 v9, 5, v9\ns_lshl_b32 s{S_B}, s{S_WAVE}, 9\nv_add_u32 v9, s{S_B}, v9\ns_mov_b64 exec, vcc")
        g(f"ds_write_b128 v9, v[16:19] offset:{LDS_XN}\nds_write_b128 v9, v[20:23] offset:{LDS_XN+16}\ns_mov_b64 exec, -1")
        g(f"v_lshlrev_b32 v8, 9, v2\nv_lshl_add_u32 v8, v11, 1, v8\ns_lshl_b32 s{S_B}, s{S_W4}, 7\nv_add_u32 v8, s{S_B}, v8")
        stamp()
        g("s_waitcnt lgkmcnt(0)\ns_barrier")
        g(f"ds_read_b128 v[{BOP}:{BOP+3}], v8 offset:{LDS_XN}")
        if grp==1:
            Ln=g.new("Lnopl")
            g(f"s_cmp_lg_u32 s{S_WAVE}, 7\ns_cbranch_scc1 {Ln}\nv_mov_b32 v24, 0")
            g(f"buffer_load_dwordx2 v[28:29], v24, s[{R_DBG}:{R_DBG+3}], 0 offen sc0 sc1")
            g.label(Ln)
        st.need("E","lgkmcnt(0)")
        unit_compute(g,UA,BOP,True)
        dump_acc(g,S_MN,S_W4,LDS_DUMP+(0 if grp==0 else 32768))
        if grp==0:
            st.need("B")
            unit_compute(g,UB,BOP,True)
            dump_acc(g,S_MN,S_W4,LDS_DUMP+16384)
        else:
            Ln=g.new("Lnoep")
            g(f"s_cmp_lg_u32 s{S_WAVE}, 7\ns_cbranch_scc1 {Ln}")
            Lc=g.new("Lep"); Ld=g.new("Lepd")
            g(f"s_mov_b32 s{S_SPIN}, 0")
            g.label(Lc)
            g(f"v_readfirstlane_b32 s{S_B}, v29\ns_nop 3\ns_cmp_lt_i32 s{S_B}, 0\ns_cbranch_scc1 {Ld}")
            g(f"s_add_u32 s{S_SPIN}, s{S_SPIN}, 1\ns_cmp_ge_u32 s{S_SPIN}, {SPIN_MAX}\ns_cbranch_scc1 {Ld}")
            g(f"buffer_load_dwordx2 v[28:29], v24, s[{R_DBG}:{R_DBG+3}], 0 offen sc0 sc1\ns_waitcnt vmcnt(0)\ns_branch {Lc}")
            g.label(Ld)
            g(f"v_mov_b32 v8, {LDS_EP}\ns_mov_b64 exec, 1\nds_write_b64 v8, v[28:29]\ns_mov_b64 exec, -1")
            g.label(Ln)
            st.need("K0")
        g(f"s_lshl_b32 s{S_B}, s{S_W4}, 6\nv_add_u32 v12, s{S_B}, v0")
        if grp==0: g("v_lshlrev_b32 v6, 4, v12")
        else: g("v_lshrrev_b32 v6, 5, v12\nv_lshlrev_b32 v6, 14, v6\nv_and_b32 v9, 31, v12\nv_lshl_add_u32 v6, v9, 4, v6")
        g("v_and_b32 v9, 15, v0\nv_lshlrev_b32 v7, 14, v1\nv_lshl_add_u32 v7, v9, 4, v7")
        stamp()
        g("s_waitcnt lgkmcnt(0)\ns_barrier")
        g(f"v_mov_b32 v8, {LDS_EP}\nds_read_b64 v[28:29], v8\ns_waitcnt lgkmcnt(0)\nv_readfirstlane_b32 s{S_A}, v28\nv_readfirstlane_b32 s{S_B}, v29\ns_nop 3")
        g(f"s_and_b32 s{S_TAG}, s{S_A}, {TAGMASK}\ns_bfe_u32 s{S_TAG+1}, s{S_A}, 0xa000a\ns_bfe_u32 s{S_TAG+2}, s{S_A}, 0xa0014")
        g(f"s_lshr_b32 s{S_TAG+3}, s{S_A}, 30\ns_and_b32 s{S_B}, s{S_B}, 0xff\ns_lshl_b32 s{S_B}, s{S_B}, 2\ns_or_b32 s{S_TAG+3}, s{S_TAG+3}, s{S_B}")
        def publish_p1(lo, hi, only224):
            Lsk=g.new("Lsk")
            if only224: g(f"s_cmp_ge_u32 s2, 224\ns_cbranch_scc1 {Lsk}")
            g(f"s_cmp_lt_u32 s{S_WAVE}, {lo}\ns_cbranch_scc1 {Lsk}\ns_cmp_ge_u32 s{S_WAVE}, {hi}\ns_cbranch_scc1 {Lsk}")
            g(f"s_lshr_b32 s{S_A}, s{S_WAVE}, 1\ns_and_b32 s{S_B}, s{S_WAVE}, 1\ns_lshl_b32 s{S_C}, s{S_A}, 14\ns_lshl_b32 s{S_D}, s{S_B}, 9\ns_add_u32 s{S_C}, s{S_C}, s{S_D}")
            g(f"v_lshlrev_b32 v8, 10, v1\nv_lshl_add_u32 v8, v3, 7, v8\nv_lshl_add_u32 v8, v2, 4, v8\nv_add_u32 v8, s{S_C}, v8")
            n=0
            for wv in range(4):
                for e in range(2):
                    g(f"ds_read_b128 v[{32+4*n}:{35+4*n}], v8 offset:{LDS_DUMP+wv*4096+e*256}"); n+=1
            g(f"s_cmp_eq_u32 s{S_A}, 1\ns_cselect_b32 s{S_E}, 2, 0\ns_cmp_eq_u32 s{S_A}, 2\ns_cselect_b32 s{S_E}, 5, s{S_E}\ns_add_u32 s{S_E}, s{S_E}, s{S_CS}\ns_and_b32 s{S_E}, s{S_E}, 7\ns_and_b32 s{S_F}, s{S_CS}, 0xf8\ns_or_b32 s{S_E}, s{S_E}, s{S_F}")
            g(f"s_lshl_b32 s{S_C}, s{S_A}, 19\ns_lshl_b32 s{S_D}, s{S_KS}, 17\ns_add_u32 s{S_C}, s{S_C}, s{S_D}\ns_lshl_b32 s{S_D}, s{S_E}, 8\ns_add_u32 s{S_C}, s{S_C}, s{S_D}\ns_lshl_b32 s{S_D}, s{S_B}, 4\ns_add_u32 s{S_C}, s{S_C}, s{S_D}")
            g("v_lshlrev_b32 v9, 14, v2\nv_lshl_add_u32 v9, v3, 7, v9\nv_lshl_add_u32 v9, v1, 5, v9")
            g("s_waitcnt lgkmcnt(0)")
            for r in range(4):
                g(f"v_add_f32 v{24+r}, v{32+r}, v{36+r}")
                for n in range(2,8): g(f"v_add_f32 v{24+r}, v{24+r}, v{32+4*n+r}")
            tag4(24,0xff)
            g(f"buffer_store_dwordx4 v[24:27], v9, s[{R_WS}:{R_WS+3}], s{S_C} offen sc1")
            g.label(Lsk)
        if grp==0:
            publish_p1(0,2,False); publish_p1(2,4,True)
        else: publish_p1(4,6,True)
        stamp()
        def lds_qh_addr():
            g(f"s_lshl_b32 s{S_B}, s{S_W4}, 6\nv_add_u32 v12, s{S_B}, v0")
            g("v_lshrrev_b32 v14, 4, v12\nv_lshlrev_b32 v14, 7, v14\nv_lshl_add_u32 v14, v3, 6, v14\nv_lshl_add_u32 v14, v2, 1, v14")
        if grp==0:
            gather_check(lambda: st.need("g1"), gitems, gregs, 8, 9, 10, 0xff)
            lds_qh_addr()
            for r in range(4): sum4(UA+r)
            write4(UA,14,LDS_QS)
        else:
            Lskh=g.new("Lskh")
            st.pump(st.m["g1"]+AH-st.n)
            g(f"s_cmp_ge_u32 s2, 224\ns_cbranch_scc1 {Lskh}")
            gather_check(lambda: st.need("g1"), gitems, gregs, 8, 9, 10, 0xff)
            lds_qh_addr()
            H=UB
            for m in range(2):
                for r in range(4): sum4(H+16*m+r)
            rnd2(g,H,H+1,8); rnd2(g,H+2,H+3,8); rnd2(g,H+16,H+17,8); rnd2(g,H+18,H+19,8)
            for r in range(4):
                g(f"v_mul_f32 v{H+r}, 0xbfb8aa3b, v{H+r}\nv_exp_f32 v{H+r}, v{H+r}\ns_nop 0\nv_add_f32 v{H+r}, 1.0, v{H+r}\nv_rcp_f32 v{H+r}, v{H+r}\ns_nop 0")
            rnd2(g,H,H+1,8); rnd2(g,H+2,H+3,8)
            for r in range(4): g(f"v_mul_f32 v{H+r}, v{H+r}, v{H+16+r}")
            write4(H,14,LDS_HS)
            g.label(Lskh)
        if D2: st.D=D2; st.AH=D2; st.pump(D2-AH)
        stamp()
        g("s_waitcnt lgkmcnt(0)\ns_barrier")
        g("v_lshlrev_b32 v8, 8, v2\nv_lshl_add_u32 v8, v1, 4, v8")
        for kk in range(4):
            g(f"ds_read_b128 v[{BOP+4*kk}:{BOP+4*kk+3}], v8 offset:{LDS_QS+kk*64}")
        st.pump(2)
        c=min(63,st.n-st.m["K1"]); g(f"s_waitcnt vmcnt({c}) lgkmcnt(0)")
        for t in range(2):
            u=KU[t]
            for kk in range(4):
                for T in range(2):
                    a=ACC+4*(2*t+T)
                    c="0" if kk==0 else f"v[{a}:{a+3}]"
                    g(f"v_mfma_f32_16x16x32_bf16 v[{a}:{a+3}], v[{u+16*T+4*kk}:{u+16*T+4*kk+3}], v[{BOP+4*kk}:{BOP+4*kk+3}], {c}")
        st.pump(2)
        g("s_nop 7")
        NS=16
        if mimic:
            g(f"s_mov_b32 s{S_A}, 0x3db504f3")
            for i in range(0,NS,2):
                a=ACC+i
                rnd2(g,a,a+1,8)
                g(f"v_mul_f32 v{a}, s{S_A}, v{a}\nv_mul_f32 v{a+1}, s{S_A}, v{a+1}")
                rnd2(g,a,a+1,8)
            g(f"s_mov_b32 s{S_C2}, 0x3fb8aa3b")
        else:
            g(f"s_mov_b32 s{S_C2}, 0x3e0293ee")
        g(f"v_max3_f32 v8, v{ACC}, v{ACC+1}, v{ACC+2}")
        for i in range(3,NS-1,2): g(f"v_max3_f32 v8, v8, v{ACC+i}, v{ACC+i+1}")
        g(f"v_max_f32 v8, v8, v{ACC+NS-1}")
        g("v_mov_b32 v9, v8\ns_nop 1\nv_permlane16_swap_b32 v8, v9\ns_nop 1\nv_max_f32 v8, v8, v9\nv_mov_b32 v9, v8\ns_nop 1\nv_permlane32_swap_b32 v8, v9\ns_nop 1\nv_max_f32 v8, v8, v9")
        g(f"v_mul_f32 v8, s{S_C2}, v8")
        for i in range(NS): g(f"v_fma_f32 v{ACC+i}, v{ACC+i}, s{S_C2}, -v8")
        for i in range(NS): g(f"v_exp_f32 v{ACC+i}, v{ACC+i}")
        g("s_nop 0")
        for i in range(NS//2): g(f"v_cvt_pk_bf16_f32 v{BOP+i}, v{ACC+2*i}, v{ACC+2*i+1}")
        g("v_mov_b32 v9, 0")
        for i in range(NS//2):
            g(f"v_lshlrev_b32 v10, 16, v{BOP+i}\nv_and_b32 v11, 0xffff0000, v{BOP+i}\nv_add_f32 v9, v9, v10\nv_add_f32 v9, v9, v11")
        g("v_mov_b32 v10, v9\ns_nop 1\nv_permlane16_swap_b32 v9, v10\ns_nop 1\nv_add_f32 v9, v9, v10\nv_mov_b32 v10, v9\ns_nop 1\nv_permlane32_swap_b32 v9, v10\ns_nop 1\nv_add_f32 v9, v9, v10")
        g(f"v_lshlrev_b32 v10, 3, v0\ns_lshl_b32 s{S_B}, s{S_WAVE}, 6\nv_add_u32 v10, s{S_B}, v10\ns_mov_b64 exec, 0xff")
        g(f"ds_write_b64 v10, v[8:9] offset:{LDS_MLD}\ns_mov_b64 exec, -1\ns_nop 1")
        stamp()
        st.need("V0"); unit_compute(g,VU[0],BOP,True)
        st.D=DL
        st.need("V1",ah=16); unit_compute(g,VU[1],BOP+4,False)
        assert not st.q
        dump_acc(g,S_MW,S_WAVE,0,LDS_ADUMP)
        stamp()
        g("s_waitcnt lgkmcnt(0)\ns_barrier")
        g(f"s_lshl_b32 s{S_B}, s{S_WAVE}, 3\nv_mov_b32 v8, s{S_B}")
        for wv in range(8): g(f"ds_read_b64 v[{16+2*wv}:{17+2*wv}], v8 offset:{LDS_MLD+64*wv}")
        g(f"v_lshrrev_b32 v9, 5, v0\nv_bfe_u32 v10, v0, 3, 2\nv_lshlrev_b32 v11, 14, v9\nv_lshl_add_u32 v11, v2, 9, v11\nv_lshl_add_u32 v11, v10, 7, v11\ns_lshl_b32 s{S_B}, s{S_WAVE}, 4\ns_add_u32 s{S_B}, s{S_B}, {LDS_ADUMP}\nv_add_u32 v11, s{S_B}, v11")
        for n in range(4): g(f"ds_read_b128 v[{32+4*n}:{35+4*n}], v11 offset:{4096*n}")
        g(f"v_mov_b32 v15, 0x{TAGMASK:x}")
        g("s_waitcnt lgkmcnt(4)")
        g("v_max3_f32 v48, v16, v18, v20\nv_max3_f32 v48, v48, v22, v24\nv_max3_f32 v48, v48, v26, v28\nv_max_f32 v48, v48, v30")
        g(f"v_bfi_b32 v48, v15, s{S_TAG}, v48")
        for wv in range(8): g(f"v_sub_f32 v{52+wv}, v{16+2*wv}, v48\nv_exp_f32 v{52+wv}, v{52+wv}")
        g("s_nop 0\nv_mul_f32 v49, v52, v17")
        for wv in range(1,8): g(f"v_fmac_f32 v49, v{52+wv}, v{17+2*wv}")
        g("v_cmp_lt_u32 vcc, 31, v0\ns_nop 1")
        for n in range(4): g(f"v_cndmask_b32 v{52+n}, v{52+n}, v{56+n}, vcc")
        g("s_waitcnt lgkmcnt(0)")
        for r in range(4):
            g(f"v_mul_f32 v{24+r}, v52, v{32+r}")
            for n in range(1,4): g(f"v_fmac_f32 v{24+r}, v{52+n}, v{32+4*n+r}")
        for r in range(4): g(f"v_mov_b32 v{28+r}, v{24+r}")
        g("s_nop 1")
        for r in range(4): g(f"v_permlane32_swap_b32 v{24+r}, v{28+r}")
        g("s_nop 1")
        for r in range(4): g(f"v_add_f32 v{24+r}, v{24+r}, v{28+r}")
        g("v_cndmask_b32 v24, v24, v48, vcc\nv_cndmask_b32 v25, v25, v49, vcc\nv_cndmask_b32 v26, v26, v48, vcc\nv_cndmask_b32 v27, v27, v49, vcc")
        g("v_lshlrev_b32 v9, 4, v0\nv_min_u32 v9, 512, v9")
        tag4(24)
        g(f"s_lshr_b32 s{S_A}, s2, 3\ns_lshl_b32 s{S_A}, s{S_A}, 3\ns_add_u32 s{S_A}, s{S_A}, s{S_WAVE}\ns_lshl_b32 s{S_A}, s{S_A}, 3\ns_and_b32 s{S_B}, s2, 7\ns_add_u32 s{S_A}, s{S_A}, s{S_B}\ns_mul_i32 s{S_A}, s{S_A}, {APS}\ns_add_u32 s{S_A}, s{S_A}, {WS_AP}")
        g("s_mov_b32 exec_hi, 1")
        st.op(f"buffer_store_dwordx4 v[24:27], v9, s[{R_WS}:{R_WS+3}], s{S_A} offen sc1")
        g("s_mov_b64 exec, -1")
        g(f"v_lshlrev_b32 v6, 8, v2\nv_lshl_add_u32 v6, v1, 4, v6\ns_lshl_b32 s{S_B}, s{S_W4}, 6\nv_add_u32 v6, s{S_B}, v6")
        stamp()
        def pub_quarter(region_base, wsbase):
            g(f"v_lshrrev_b32 v9, 3, v0\nv_lshlrev_b32 v10, 9, v9\nv_lshl_add_u32 v10, v2, 4, v10\ns_lshl_b32 s{S_B}, s{S_W4}, 7\nv_add_u32 v10, s{S_B}, v10")
            for n in range(4): g(f"ds_read_b128 v[{32+4*n}:{35+4*n}], v10 offset:{region_base+4096*n}")
            g(f"v_lshlrev_b32 v11, 12, v2\nv_lshl_add_u32 v11, v9, 4, v11")
            g(f"s_lshr_b32 s{S_E}, s2, 3\ns_lshl_b32 s{S_E}, s{S_E}, 15\ns_and_b32 s{S_F}, s2, 7\ns_lshl_b32 s{S_F}, s{S_F}, 9\ns_add_u32 s{S_E}, s{S_E}, s{S_F}\ns_add_u32 s{S_E}, s{S_E}, s{S_B}\ns_add_u32 s{S_E}, s{S_E}, {wsbase}")
            g("s_waitcnt lgkmcnt(0)")
            for r in range(4): g(f"v_add_f32 v{24+r}, v{32+r}, v{36+r}\nv_add_f32 v{28+r}, v{40+r}, v{44+r}\nv_add_f32 v{24+r}, v{24+r}, v{28+r}")
            tag4(24)
            g(f"buffer_store_dwordx4 v[24:27], v11, s[{R_WS}:{R_WS+3}], s{S_E} offen sc1")
        if grp==0:
            g(f"ds_read_b128 v[{BOP}:{BOP+3}], v6 offset:{LDS_HS}")
            st.need("L","lgkmcnt(0)")
            unit_compute(g,UA,BOP,True)
            dump_acc(g,S_MW,S_W4,LDS_DUMP+32768)
            g("s_waitcnt lgkmcnt(0)\ns_barrier")
            Ls=g.new("Lsd")
            g(f"s_cmp_ge_u32 s2, 224\ns_cbranch_scc1 {Ls}")
            pub_quarter(LDS_DUMP+32768, WS_DP)
            g.label(Ls)
            g(f"s_cmp_lg_u32 s{S_WAVE}, 0\ns_cbranch_scc1 L_b6only")
            g(f"s_lshr_b32 s{S_A}, s2, 5\ns_lshl_b32 s{S_A}, s{S_A}, 11\ns_and_b32 s{S_B}, s2, 7\ns_lshl_b32 s{S_B}, s{S_B}, 8\ns_add_u32 s{S_A}, s{S_A}, s{S_B}\ns_lshr_b32 s{S_B}, s2, 3\ns_and_b32 s{S_B}, s{S_B}, 3\ns_lshl_b32 s{S_B}, s{S_B}, 6\ns_add_u32 s{S_KB}, s{S_A}, s{S_B}")
            g("v_lshlrev_b32 v11, 1, v2")
            for r in range(4): g(f"buffer_load_ushort v{60+r}, v11, s[{R_X}:{R_X+3}], s{S_KB} offen offset:{16*r}")
            g(f"v_lshrrev_b32 v5, 3, v0\nv_lshlrev_b32 v6, 15, v5\nv_lshl_add_u32 v6, v2, 4, v6\ns_lshl_b32 s{S_E}, s{S_KB}, 1")
            g("v_cmp_gt_u32 vcc, 4, v5\nv_subrev_u32 v7, 0x20000, v6\ns_nop 1\nv_cndmask_b32 v7, v7, v6, vcc\nv_cndmask_b32 v13, 0, 1.0, vcc")
            stamp()
            g("s_barrier")
            fitems=[(f"s_add_u32 s{S_F}, s{S_E}, {WS_SP+i*262144}", f"buffer_load_dwordx4 v[{16+4*i}:{19+4*i}], v6, s[{R_WS}:{R_WS+3}], s{S_F} offen sc1") for i in range(4)]
            fitems+=[(f"s_add_u32 s{S_F}, s{S_E}, {WS_DP+i*262144}", f"buffer_load_dwordx4 v[{32+4*i}:{35+4*i}], v{7 if i==3 else 6}, s[{R_WS}:{R_WS+3}], s{S_F} offen sc1") for i in range(4)]
            masked_gather([([fitems[i]],[16+4*i]) for i in range(8)],8,9,10,SL2)
            stamp()
            for r in range(4): g(f"v_mul_f32 v{44+r}, v{44+r}, v13")
            for m in range(2):
                for r in range(4): sum4(16+16*m+r)
            regs=[16,17,18,19,32,33,34,35]
            g("s_nop 1")
            for r in regs: g(f"v_add_f32_dpp v{r}, v{r}, v{r} row_ror:8 row_mask:0xf bank_mask:0xf")
            for r in regs: g(f"v_mov_b32 v{r+4}, v{r}")
            g("s_nop 1")
            for r in regs: g(f"v_permlane16_swap_b32 v{r}, v{r+4}")
            g("s_nop 1")
            for r in regs: g(f"v_add_f32 v{r}, v{r}, v{r+4}")
            for r in regs: g(f"v_mov_b32 v{r+4}, v{r}")
            g("s_nop 1")
            for r in regs: g(f"v_permlane32_swap_b32 v{r}, v{r+4}")
            g("s_nop 1")
            for r in regs: g(f"v_add_f32 v{r}, v{r}, v{r+4}")
            rnd2(g,16,17,5); rnd2(g,18,19,5); rnd2(g,32,33,5); rnd2(g,34,35,5)
            for r in range(4):
                g(f"v_mul_f32 v{20+r}, 0xbfb8aa3b, v{32+r}\nv_exp_f32 v{20+r}, v{20+r}\ns_nop 0\nv_add_f32 v{20+r}, 1.0, v{20+r}\nv_rcp_f32 v{20+r}, v{20+r}\ns_nop 0\nv_mul_f32 v{32+r}, v{32+r}, v{20+r}")
            rnd2(g,32,33,5); rnd2(g,34,35,5)
            for r in range(4): g(f"v_mul_f32 v{16+r}, v{16+r}, v{32+r}")
            rnd2(g,16,17,5); rnd2(g,18,19,5)
            for r in range(4): g(f"v_lshlrev_b32 v{60+r}, 16, v{60+r}\nv_add_f32 v{16+r}, v{16+r}, v{60+r}")
            g("v_cvt_pk_bf16_f32 v20, v16, v17\nv_cvt_pk_bf16_f32 v21, v18, v19")
            g("s_mov_b64 exec, 0xff")
            g(f"buffer_store_short v20, v11, s[{R_OUT}:{R_OUT+3}], s{S_KB} offen\nbuffer_store_short_d16_hi v20, v11, s[{R_OUT}:{R_OUT+3}], s{S_KB} offen offset:16")
            g(f"buffer_store_short v21, v11, s[{R_OUT}:{R_OUT+3}], s{S_KB} offen offset:32\nbuffer_store_short_d16_hi v21, v11, s[{R_OUT}:{R_OUT+3}], s{S_KB} offen offset:48")
            g("s_mov_b64 exec, -1")
            stamp(True)
            stamp_out(0)
            g("s_endpgm")
        else:
            g(f"s_lshl_b32 s{S_B}, s{S_W4}, 6\nv_add_u32 v12, s{S_B}, v0")
            g(f"v_lshrrev_b32 v9, 5, v12\nv_and_b32 v10, 31, v12\ns_mov_b32 s{S_A}, {32*8*APS}\nv_mul_lo_u32 v13, v9, s{S_A}\nv_add_u32 v14, 512, v13\nv_lshl_add_u32 v13, v10, 4, v13")
            g(f"s_lshr_b32 s{S_E}, s2, 3\ns_mul_i32 s{S_E}, s{S_E}, {8*APS}\ns_add_u32 s{S_E}, s{S_E}, {WS_AP}")
            oitems=[(None,f"buffer_load_dwordx4 v[{96+4*sp}:{99+4*sp}], v14, s[{R_WS}:{R_WS+3}], s{S_E} offen offset:{APS*sp} sc1") for sp in range(8)]
            oitems+=[(None,f"buffer_load_dwordx4 v[{32+4*sp}:{35+4*sp}], v13, s[{R_WS}:{R_WS+3}], s{S_E} offen offset:{APS*sp} sc1") for sp in range(8)]
            masked_gather([([oitems[sp],oitems[8+sp]],[96+4*sp,32+4*sp]) for sp in range(8)],8,9,10,SL1,
                          mid=lambda: g("v_bfe_u32 v10, v0, 3, 2\nv_lshlrev_b32 v11, 8, v9\nv_lshl_add_u32 v11, v10, 6, v11\nv_lshl_add_u32 v11, v2, 1, v11"))
            stamp()
            g("v_max3_f32 v16, v96, v100, v104\nv_max3_f32 v16, v16, v108, v112\nv_max3_f32 v16, v16, v116, v120\nv_max_f32 v16, v16, v124")
            for sp in range(8): g(f"v_sub_f32 v{24+sp}, v{96+4*sp}, v16\nv_exp_f32 v{24+sp}, v{24+sp}")
            g("s_nop 0\nv_mul_f32 v17, v24, v97")
            for sp in range(1,8): g(f"v_fmac_f32 v17, v{24+sp}, v{97+4*sp}")
            g("v_rcp_f32 v18, v17\ns_nop 0\nv_fma_f32 v19, -v17, v18, 1.0\nv_fma_f32 v18, v19, v18, v18")
            for r in range(4):
                g(f"v_mul_f32 v{20+r}, v24, v{32+r}")
                for sp in range(1,8): g(f"v_fmac_f32 v{20+r}, v{24+sp}, v{32+4*sp+r}")
                g(f"v_mul_f32 v{20+r}, v{20+r}, v18")
            write4(20,11,LDS_OS)
            g("s_waitcnt lgkmcnt(0)\ns_barrier")
            g(f"ds_read_b128 v[{BOP}:{BOP+3}], v6 offset:{LDS_OS}")
            g("s_waitcnt vmcnt(0) lgkmcnt(0)")
            unit_compute(g,UA,BOP,True)
            dump_acc(g,S_MW,S_W4,LDS_DUMP)
            g("s_waitcnt lgkmcnt(0)\ns_barrier")
            pub_quarter(LDS_DUMP, WS_SP)
            stamp(True)
            stamp_out(1)
            g("s_endpgm")
    program(0)
    g.label("L_g1")
    program(1)
    g.label("L_b6only")
    g("s_barrier")
    g.label("L_end")
    g("s_endpgm")
    tail=f""".section .rodata,"a"
.p2align 6
.amdhsa_kernel {KN}
  .amdhsa_next_free_vgpr 256
  .amdhsa_next_free_sgpr 102
  .amdhsa_accum_offset 256
  .amdhsa_group_segment_fixed_size 0
  .amdhsa_kernarg_size 96
  .amdhsa_user_sgpr_count 2
  .amdhsa_user_sgpr_kernarg_segment_ptr 1
  .amdhsa_system_sgpr_workgroup_id_x 1
.end_amdhsa_kernel
"""
    return hdr+g.text()+tail

if __name__=="__main__":
    out = sys.argv[1] if len(sys.argv)>1 else "recurrent_scan__gqa_block_cached__glu_gated_glu__decode.s"
    kw={}
    for a in sys.argv[2:]:
        if a=="stamps": kw["stamps"]=1
        elif a=="lite": kw["stamps"]=2
        elif a=="dbg": kw["stamps"]=3
        elif "=" in a:
            k,v=a.split("="); kw[k]=int(v)
    open(out,"w").write(gen(**kw))
```

```python
import sys
KN="recurrent_scan__gqa_block_cached__glu_gated_glu__decode_kernel"

class G:
    def __init__(s): s.o=[]; s.lbl=0
    def __call__(s, t):
        for line in t.strip("\n").split("\n"):
            s.o.append("    "+line.strip())
    def label(s, n): s.o.append(n+":")
    def new(s, p="L"):
        s.lbl+=1; return f"{p}_{s.lbl}"
    def text(s): return "\n".join(s.o)+"\n"

LDS_DUMP=0; LDS_XN=49152; LDS_QS=53248; LDS_HS=55296; LDS_OS=57344; LDS_MLD=59392; LDS_EP=59904
LDS_ADUMP=61440
LDS_TOTAL=61440+32768
WS_QP=0; WS_GP=0x80000; WS_UP=0x100000; WS_AP=0x200000; WS_SP=0x400000; WS_DP=0x500000; WS_ST=0x600000
APS=576
WS_BYTES=268435456
SPIN_MAX=100000
TAGBITS=10; TAGMASK=(1<<TAGBITS)-1; NTAG=(~TAGMASK)&0xffffffff

P_X=16;P_K=18;P_V=20;P_WQ=22;P_WO=24;P_BX=26;P_G=28;P_U=30;P_D=32;P_OUT=34;P_DBG=36;P_WS=38
R_K=40;R_V=44;R_A=48;R_B=52;R_L=56;R_X=60;R_WS=64;R_DBG=68;R_OUT=72
S_WAVE=76; S_T=77; S_SELLO=78; S_SELHI=79; S_KS=80; S_CS=81
S_A=82;S_B=83;S_C=84;S_D=85;S_E=86;S_F=87;S_SPIN=88;S_KB=89;S_LB=90;S_C2=91
S_TAG=92; S_MN=96; S_MW=98; S_W4=100; S_XB=101
S_AB=16; S_BB=17; S_GB=18
ACC=32; BOP=16; TA=8; TB=12
UA=64; UB=96; KU=[128,160]; VU=[192,224]

def srd(g, r, p, nbytes):
    g(f"s_mov_b32 s{r}, s{p}\ns_and_b32 s{r+1}, s{p+1}, 0xffff\ns_mov_b32 s{r+2}, {nbytes}\ns_mov_b32 s{r+3}, 0x20000")

class Stream:
    def __init__(s,g,D,AH,GR=2): s.g=g; s.n=0; s.q=[]; s.D=D; s.AH=AH; s.GR=GR; s.m={}; s.total=0
    def add(s,pre,text): s.q.append((pre,text)); s.total+=1
    def qmark(s,name): s.m[name]=s.total
    def op(s,text):
        assert not s.q
        s.g(text); s.n+=1; s.total+=1
    def pump(s,k,paced=True):
        k=min(k,len(s.q)); i=0
        while i<k:
            c=min(s.GR,k-i)
            if paced and s.n > s.D-c: s.g(f"s_waitcnt vmcnt({s.D-c})")
            for _ in range(c):
                pre,text=s.q.pop(0)
                if pre: s.g(pre)
                s.g(text); s.n+=1
            i+=c
    def need(s,name,extra="",ah=None):
        tgt=s.m[name]; ah=s.AH if ah is None else ah
        s.pump(max(0,tgt+ah-s.n))
        c=min(63,s.n-tgt); s.g(f"s_waitcnt vmcnt({c}) {extra}")

def unit_loads(st, dst, rsrd, vaddr, sbase, offs, flags, name):
    for j,off in enumerate(offs):
        hi=off & ~0xfff; lo=off & 0xfff
        if hi==0: pre=None; sreg=f"s{sbase}"
        else: pre=f"s_add_u32 s{S_T}, s{sbase}, {hi}"; sreg=f"s{S_T}"
        st.add(pre,f"buffer_load_dwordx4 v[{dst+4*j}:{dst+4*j+3}], v{vaddr}, s[{rsrd}:{rsrd+3}], {sreg} offen offset:{lo} {flags}")
    st.qmark(name)

def unit_compute(g, u, bop, first):
    def perms(t, jp):
        q=jp>>1; sel=S_SELHI if jp&1 else S_SELLO
        for i in range(4):
            g(f"v_perm_b32 v{t+i}, v{u+4*(2*i+1)+q}, v{u+4*(2*i)+q}, s{sel}")
    def mf(t, jp):
        c = "0" if first else f"v[{ACC+4*jp}:{ACC+4*jp+3}]"
        g(f"v_mfma_f32_16x16x32_bf16 v[{ACC+4*jp}:{ACC+4*jp+3}], v[{t}:{t+3}], v[{bop}:{bop+3}], {c}")
    T=[TA,TB]
    perms(T[0],0)
    for jp in range(8):
        if jp<7: perms(T[(jp+1)&1], jp+1)
        else: g("s_nop 1")
        mf(T[jp&1], jp)

def dump_acc(g, mask, swave, base, vbase=0):
    g(f"s_lshl_b32 s{S_B}, s{swave}, 12\ns_add_u32 s{S_B}, s{S_B}, {vbase}\nv_lshlrev_b32 v8, 7, v1\nv_lshl_add_u32 v8, v2, 4, v8\nv_add_u32 v8, s{S_B}, v8")
    g(f"s_mov_b64 exec, s[{mask}:{mask+1}]")
    g("s_nop 5")
    for jp in range(8):
        g(f"ds_write_b128 v8, v[{ACC+4*jp}:{ACC+4*jp+3}] offset:{base+jp*512}")
    g("s_mov_b64 exec, -1")

def rnd2(g,a,b,t):
    g(f"v_cvt_pk_bf16_f32 v{t}, v{a}, v{b}\nv_lshlrev_b32 v{a}, 16, v{t}\nv_and_b32 v{b}, 0xffff0000, v{t}")

def gen(mimic=True, nt="nt", stamps=False, D=4, AH=4, GR=2, DL=8, gpos=1, D2=0, SL1=4, SL2=2, FS=0, TP=0, SMP=0, SL3=0):
    g=G()
    hdr=f"""; fused persistent decode kernel: 256 WGs x 8 streaming waves, tagged cross-WG hand-offs
; @launch grid=(256,1,1) block=(512,1,1) lds={LDS_TOTAL}
.amdgcn_target "amdgcn-amd-amdhsa--gfx950"
.text
.globl {KN}
.p2align 8
.type {KN},@function
{KN}:
"""
    stc={'n':0}
    def stamp(always=False):
        if not stamps: return
        if stamps==2 and not always: return
        assert stc['n']<11
        g(f"s_memrealtime s[14:15]\ns_waitcnt lgkmcnt(0)\ns_mov_b32 s{3+stc['n']}, s14"); stc['n']+=1
    def stamp_out(grp):
        if not stamps: return
        L=g.new("Lso")
        g(f"s_cmp_lg_u32 s{S_W4}, 0\ns_cbranch_scc1 {L}")
        g("s_mov_b64 exec, 1")
        g(f"s_lshl_b32 s{S_E}, s2, 7\ns_add_u32 s{S_E}, s{S_E}, {WS_ST+64*grp}\nv_mov_b32 v9, 0")
        for i in range(stc['n']):
            g(f"v_mov_b32 v8, s{3+i}\nbuffer_store_dword v8, v9, s[{R_WS}:{R_WS+3}], s{S_E} offen offset:{4*i}")
        g("s_mov_b64 exec, -1")
        g.label(L)
    g(f"s_cmp_ge_u32 s2, 256\ns_cbranch_scc1 L_end")
    g("s_load_dwordx16 s[16:31], s[0:1], 0\ns_load_dwordx8 s[32:39], s[0:1], 64")
    g(f"v_lshrrev_b32 v1, 6, v0\nv_and_b32 v0, 63, v0\ns_nop 0\nv_readfirstlane_b32 s{S_WAVE}, v1")
    g(f"s_mov_b32 s{S_SELLO}, 0x05040100\ns_mov_b32 s{S_SELHI}, 0x07060302")
    g(f"s_and_b32 s{S_KS}, s2, 3\ns_lshr_b32 s{S_CS}, s2, 2")
    g(f"s_nop 3\ns_and_b32 s{S_W4}, s{S_WAVE}, 3")
    g("v_lshrrev_b32 v1, 4, v0\nv_and_b32 v2, 7, v0\nv_bfe_u32 v3, v0, 3, 1\nv_and_b32 v9, 15, v0")
    g("v_lshlrev_b32 v11, 5, v3\nv_lshl_add_u32 v11, v1, 3, v11")
    g("v_lshlrev_b32 v10, 5, v0")
    g("v_lshlrev_b32 v4, 8, v9\nv_lshl_add_u32 v4, v1, 4, v4")
    g("v_lshlrev_b32 v5, 10, v1\nv_lshl_add_u32 v5, v9, 4, v5")
    g("v_lshlrev_b32 v6, 13, v11\nv_lshl_add_u32 v6, v2, 4, v6")
    g("v_mul_u32_u24 v7, 7168, v11\nv_lshl_add_u32 v7, v2, 4, v7")
    g(f"v_lshrrev_b32 v8, 1, v1\nv_cmp_eq_u32 s[{S_MN}:{S_MN+1}], v3, v8\nv_cmp_eq_u32 s[{S_MW}:{S_MW+1}], 0, v3")
    g(f"s_lshl_b32 s{S_XB}, s{S_WAVE}, 11")
    g("s_waitcnt lgkmcnt(0)")
    srd(g,R_X,P_X,16384)
    g(f"buffer_load_dwordx4 v[16:19], v10, s[{R_X}:{R_X+3}], s{S_XB} offen\nbuffer_load_dwordx4 v[20:23], v10, s[{R_X}:{R_X+3}], s{S_XB} offen offset:16")
    srd(g,R_WS,P_WS,WS_BYTES); srd(g,R_DBG,P_DBG,256); srd(g,R_OUT,P_OUT,16384)
    srd(g,R_K,P_K,33554432); srd(g,R_V,P_V,33554432)
    g(f"s_lshl_b32 s{S_KB}, s2, 17\ns_lshl_b32 s{S_B}, s{S_WAVE}, 14\ns_add_u32 s{S_KB}, s{S_KB}, s{S_B}")
    g(f"s_lshr_b32 s{S_LB}, s2, 3\ns_lshl_b32 s{S_LB}, s{S_LB}, 18\ns_and_b32 s{S_B}, s2, 7\ns_lshl_b32 s{S_B}, s{S_B}, 8\ns_add_u32 s{S_LB}, s{S_LB}, s{S_B}")
    g(f"s_lshl_b32 s{S_B}, s{S_W4}, 16\ns_add_u32 s{S_LB}, s{S_LB}, s{S_B}")
    g(f"s_cmp_ge_u32 s{S_WAVE}, 4\ns_cbranch_scc1 L_g1")

    koffs=lambda t:[t*8192+T*4096+kk*64 for T in range(2) for kk in range(4)]
    voffs=lambda t:[t*8192+j*256 for j in range(4)]+[t*8192+4096+j*256 for j in range(4)]

    def tag4(d, mask=TAGMASK):
        g(f"v_mov_b32 v15, 0x{mask:x}")
        for r in range(4): g(f"v_bfi_b32 v{d+r}, v15, s{S_TAG+r}, v{d+r}")
    def check(regs, acc, t1, t2, mask):
        g(f"v_mov_b32 v{acc}, 0")
        for q in regs:
            for r in (0,2):
                g(f"v_xor_b32 v{t1}, s{S_TAG+r}, v{q+r}\nv_xor_b32 v{t2}, s{S_TAG+r+1}, v{q+r+1}\nv_or3_b32 v{acc}, v{acc}, v{t1}, v{t2}")
        g(f"v_and_b32 v{acc}, {mask}, v{acc}\nv_cmp_ne_u32 vcc, 0, v{acc}")
    def gather_check(wait, items, regs, acc, t1, t2, mask=TAGMASK):
        Lc=g.new("Lchk"); Ld=g.new("Lok")
        g(f"s_mov_b32 s{S_SPIN}, 0")
        wait()
        g.label(Lc)
        check(regs,acc,t1,t2,mask)
        g(f"s_cbranch_vccz {Ld}")
        g(f"s_add_u32 s{S_SPIN}, s{S_SPIN}, 1\ns_cmp_ge_u32 s{S_SPIN}, {SPIN_MAX}\ns_cbranch_scc1 {Ld}")
        g("s_mov_b64 exec, vcc")
        for pre,t in items:
            if pre: g(pre)
            g(t)
        g(f"s_waitcnt vmcnt(0)\ns_mov_b64 exec, -1\ns_branch {Lc}")
        g.label(Ld)
    def masked_gather(groups, acc, t1, t2, sleep, first_wait="s_waitcnt vmcnt(0)", mid=None):
        Ll=g.new("Lmg"); Ld=g.new("Lmgd")
        for items,quads in groups:
            for pre,t in items:
                if pre: g(pre)
                g(t)
        if mid: mid()
        g(f"s_mov_b32 s{S_SPIN}, 0")
        g(first_wait)
        g.label(Ll)
        for i,(items,quads) in enumerate(groups):
            check(quads,acc,t1,t2,TAGMASK)
            g(f"s_nop 0\ns_mov_b64 s[{20+2*i}:{21+2*i}], vcc")
        g("s_or_b64 vcc, s[20:21], s[20:21]")
        for i in range(1,len(groups)): g(f"s_or_b64 vcc, vcc, s[{20+2*i}:{21+2*i}]")
        g(f"s_cbranch_scc0 {Ld}")
        g(f"s_add_u32 s{S_SPIN}, s{S_SPIN}, 1\ns_cmp_ge_u32 s{S_SPIN}, {SPIN_MAX}\ns_cbranch_scc1 {Ld}")
        if sleep: g(f"s_sleep {sleep}")
        for i,(items,quads) in enumerate(groups):
            Ls=g.new("Lmgs")
            g(f"s_mov_b64 exec, s[{20+2*i}:{21+2*i}]\ns_cbranch_execz {Ls}")
            for pre,t in items:
                if pre: g(pre)
                g(t)
            g.label(Ls)
        g(f"s_mov_b64 exec, -1\ns_waitcnt vmcnt(0)\ns_branch {Ll}")
        g.label(Ld)
    def sum4(a):
        g(f"v_add_f32 v{a}, v{a}, v{a+4}\nv_add_f32 v{a+8}, v{a+8}, v{a+12}\nv_add_f32 v{a}, v{a}, v{a+8}")
    def write4(a, va, base):
        g(f"v_cvt_pk_bf16_f32 v8, v{a}, v{a+1}\nv_cvt_pk_bf16_f32 v9, v{a+2}, v{a+3}")
        g(f"ds_write_b16 v{va}, v8 offset:{base}\nds_write_b16_d16_hi v{va}, v8 offset:{base+16}\nds_write_b16 v{va}, v9 offset:{base+32}\nds_write_b16_d16_hi v{va}, v9 offset:{base+48}")

    def program(grp):
        st=Stream(g,D,AH,GR); stc['n']=0
        st.n=2; st.total=2; st.m["x"]=2
        stamp(True)
        if grp==0:
            srd(g,R_A,P_WQ,8388608); srd(g,R_B,P_G,7340032); srd(g,R_L,P_D,7340032)
            g(f"s_cmp_ge_u32 s2, 224\ns_cselect_b32 s{R_B+2}, 0, s{R_B+2}\ns_cselect_b32 s{R_L+2}, 0, s{R_L+2}")
        else:
            srd(g,R_A,P_U,7340032); srd(g,R_L,P_WO,8388608)
            g(f"s_cmp_ge_u32 s2, 224\ns_cselect_b32 s{R_A+2}, 0, s{R_A+2}")
            Ln=g.new("Lnoat")
            g(f"s_cmp_lg_u32 s{S_WAVE}, 7\ns_cbranch_scc1 {Ln}\ns_cmp_lg_u32 s2, 0\ns_cbranch_scc1 {Ln}")
            g(f"s_memrealtime s[{S_TAG}:{S_TAG+1}]\ns_waitcnt lgkmcnt(0)\ns_or_b32 s{S_TAG+1}, s{S_TAG+1}, 0x80000000\nv_mov_b32 v28, s{S_TAG}\nv_mov_b32 v29, s{S_TAG+1}\nv_mov_b32 v12, 0\ns_mov_b64 exec, 1")
            g(f"buffer_store_dwordx2 v[28:29], v12, s[{R_DBG}:{R_DBG+3}], 0 offen sc0 sc1\ns_mov_b64 exec, -1")
            g.label(Ln)
        g(f"s_lshl_b32 s{S_A}, s{S_KS}, 8\ns_lshl_b32 s{S_B}, s{S_W4}, 6\ns_add_u32 s{S_A}, s{S_A}, s{S_B}")
        g(f"s_lshl_b32 s{S_C}, s{S_CS}, 7")
        g(f"s_lshl_b32 s{S_AB}, s{S_A}, 13\ns_add_u32 s{S_AB}, s{S_AB}, s{S_C}")
        rot = 2 if grp==0 else 5
        g(f"s_add_u32 s{S_C}, s{S_CS}, {rot}\ns_and_b32 s{S_C}, s{S_C}, 7\ns_and_b32 s{S_D}, s{S_CS}, 0xf8\ns_or_b32 s{S_C}, s{S_C}, s{S_D}\ns_lshl_b32 s{S_C}, s{S_C}, 7")
        g(f"s_mul_i32 s{S_BB}, s{S_A}, 7168\ns_add_u32 s{S_BB}, s{S_BB}, s{S_C}")
        if grp==0:
            g(f"s_lshr_b32 s{S_GB}, s2, 5\ns_lshl_b32 s{S_GB}, s{S_GB}, 14\ns_lshr_b32 s{S_F}, s2, 3\ns_and_b32 s{S_F}, s{S_F}, 3\ns_lshl_b32 s{S_F}, s{S_F}, 12\ns_add_u32 s{S_GB}, s{S_GB}, s{S_F}")
            gitems=[(f"s_add_u32 s{S_T}, s{S_GB}, {WS_QP+ks*131072}", f"buffer_load_dwordx4 v[{UA+4*ks}:{UA+3+4*ks}], v6, s[{R_WS}:{R_WS+3}], s{S_T} offen sc1") for ks in range(4)]
            gregs=[UA+4*i for i in range(4)]
        else:
            g(f"s_lshr_b32 s{S_GB}, s2, 3\ns_lshl_b32 s{S_GB}, s{S_GB}, 9")
            gitems=[(f"s_add_u32 s{S_T}, s{S_GB}, {base+ks*131072}", f"buffer_load_dwordx4 v[{UB+16*m+4*ks}:{UB+3+16*m+4*ks}], v6, s[{R_WS}:{R_WS+3}], s{S_T} offen sc1") for m,base in enumerate((WS_GP,WS_UP)) for ks in range(4)]
            gregs=[UB+4*i for i in range(8)]
        def addg():
            for it in gitems: st.add(*it)
            st.qmark("g1")
        if grp==0:
            unit_loads(st,UA,R_A,6,S_AB,[j*8192 for j in range(8)],nt,"A")
            unit_loads(st,UB,R_B,7,S_BB,[j*7168 for j in range(8)],nt,"B")
        else:
            unit_loads(st,UA,R_A,7,S_BB,[j*7168 for j in range(8)],nt,"A")
        unit_loads(st,KU[0],R_K,4,S_KB,koffs(0),nt,"K0")
        unit_loads(st,KU[1],R_K,4,S_KB,koffs(1),nt,"K1")
        if gpos==0: addg()
        unit_loads(st,VU[0],R_V,5,S_KB,voffs(0),nt,"V0")
        if gpos==1: addg()
        unit_loads(st,VU[1],R_V,5,S_KB,voffs(1),nt,"V1")
        unit_loads(st,UA,R_L,7,S_LB,[j*2048 for j in range(8)],nt,"L")
        st.m["E"]=max(st.m["A"], 2+AH+1)
        st.pump(AH,paced=False)
        g(f"s_waitcnt vmcnt({AH})")
        for i in range(8):
            g(f"v_lshlrev_b32 v{32+2*i}, 16, v{16+i}\nv_and_b32 v{33+2*i}, 0xffff0000, v{16+i}")
        def red64(r,t):
            for m in ("quad_perm:[1,0,3,2]","quad_perm:[2,3,0,1]","row_half_mirror","row_mirror"):
                g(f"s_nop 1\nv_add_f32_dpp v{r}, v{r}, v{r} {m} row_mask:0xf bank_mask:0xf")
            g(f"v_mov_b32 v{t}, v{r}\ns_nop 1\nv_permlane16_swap_b32 v{r}, v{t}\ns_nop 1\nv_add_f32 v{r}, v{r}, v{t}")
            g(f"v_mov_b32 v{t}, v{r}\ns_nop 1\nv_permlane32_swap_b32 v{r}, v{t}\ns_nop 1\nv_add_f32 v{r}, v{r}, v{t}")
        g("v_add_f32 v8, v32, v33")
        for i in range(2,16): g(f"v_add_f32 v8, v8, v{32+i}")
        red64(8,9)
        g("v_mul_f32 v8, 0x3a800000, v8\nv_mov_b32 v13, 0")
        for i in range(16):
            g(f"v_sub_f32 v9, v{32+i}, v8\nv_fmac_f32 v13, v9, v9")
        red64(13,9)
        g("v_mul_f32 v13, 0x3a800000, v13")
        g("v_cvt_pk_bf16_f32 v12, v8, v13\nv_lshlrev_b32 v8, 16, v12\nv_and_b32 v13, 0xffff0000, v12")
        g("v_add_f32 v13, 0x3727c5ac, v13\nv_cvt_pk_bf16_f32 v13, v13, v13\nv_and_b32 v13, 0xffff0000, v13")
        g("v_sqrt_f32 v13, v13\ns_nop 0\nv_cvt_pk_bf16_f32 v13, v13, v13\nv_and_b32 v13, 0xffff0000, v13")
        g("v_rcp_f32 v12, v13\ns_nop 0\nv_fma_f32 v9, -v13, v12, 1.0\nv_fma_f32 v12, v9, v12, v12")
        for i in range(8):
            a=32+2*i
            g(f"v_sub_f32 v{a}, v{a}, v8\nv_sub_f32 v{a+1}, v{a+1}, v8\nv_cvt_pk_bf16_f32 v9, v{a}, v{a+1}")
            g(f"v_lshlrev_b32 v{a}, 16, v9\nv_and_b32 v{a+1}, 0xffff0000, v9")
            g(f"v_mul_f32 v{a}, v{a}, v12\nv_mul_f32 v{a+1}, v{a+1}, v12\nv_cvt_pk_bf16_f32 v{16+i}, v{a}, v{a+1}")
        g(f"v_cmp_eq_u32 vcc, s{S_KS}, v1\nv_and_b32 v9, 15, v0\nv_lshlrev_b32 v9, 5, v9\ns_lshl_b32 s{S_B}, s{S_WAVE}, 9\nv_add_u32 v9, s{S_B}, v9\ns_mov_b64 exec, vcc")
        g(f"ds_write_b128 v9, v[16:19] offset:{LDS_XN}\nds_write_b128 v9, v[20:23] offset:{LDS_XN+16}\ns_mov_b64 exec, -1")
        g(f"v_lshlrev_b32 v8, 9, v2\nv_lshl_add_u32 v8, v11, 1, v8\ns_lshl_b32 s{S_B}, s{S_W4}, 7\nv_add_u32 v8, s{S_B}, v8")
        stamp()
        g("s_waitcnt lgkmcnt(0)\ns_barrier")
        g(f"ds_read_b128 v[{BOP}:{BOP+3}], v8 offset:{LDS_XN}")
        if grp==1:
            Ln=g.new("Lnopl")
            g(f"v_mov_b32 v24, 0\ns_cmp_lg_u32 s{S_WAVE}, 7\ns_cbranch_scc1 {Ln}")
            g(f"buffer_load_dwordx2 v[28:29], v24, s[{R_DBG}:{R_DBG+3}], 0 offen sc0 sc1")
            g.label(Ln)
        st.need("E","lgkmcnt(0)")
        unit_compute(g,UA,BOP,True)
        dump_acc(g,S_MN,S_W4,LDS_DUMP+(0 if grp==0 else 32768))
        if grp==0:
            st.need("B")
            unit_compute(g,UB,BOP,True)
            dump_acc(g,S_MN,S_W4,LDS_DUMP+16384)
        else:
            Ln=g.new("Lnoep")
            g(f"s_cmp_lg_u32 s{S_WAVE}, 7\ns_cbranch_scc1 {Ln}")
            Lc=g.new("Lep"); Ld=g.new("Lepd")
            g(f"s_mov_b32 s{S_SPIN}, 0")
            g.label(Lc)
            g(f"v_readfirstlane_b32 s{S_B}, v29\ns_nop 3\ns_cmp_lt_i32 s{S_B}, 0\ns_cbranch_scc1 {Ld}")
            g(f"s_add_u32 s{S_SPIN}, s{S_SPIN}, 1\ns_cmp_ge_u32 s{S_SPIN}, {SPIN_MAX}\ns_cbranch_scc1 {Ld}")
            g(f"buffer_load_dwordx2 v[28:29], v24, s[{R_DBG}:{R_DBG+3}], 0 offen sc0 sc1\ns_waitcnt vmcnt(0)\ns_branch {Lc}")
            g.label(Ld)
            g(f"v_mov_b32 v8, {LDS_EP}\ns_mov_b64 exec, 1\nds_write_b64 v8, v[28:29]\ns_mov_b64 exec, -1")
            g.label(Ln)
            st.need("K0")
        g(f"s_lshl_b32 s{S_B}, s{S_W4}, 6\nv_add_u32 v12, s{S_B}, v0")
        if grp==0: g("v_lshlrev_b32 v6, 4, v12")
        else: g("v_lshrrev_b32 v6, 5, v12\nv_lshlrev_b32 v6, 14, v6\nv_and_b32 v9, 31, v12\nv_lshl_add_u32 v6, v9, 4, v6")
        g("v_and_b32 v9, 15, v0\nv_lshlrev_b32 v7, 14, v1\nv_lshl_add_u32 v7, v9, 4, v7")
        stamp()
        g("s_waitcnt lgkmcnt(0)\ns_barrier")
        g(f"v_mov_b32 v8, {LDS_EP}\nds_read_b64 v[28:29], v8\ns_waitcnt lgkmcnt(0)\nv_readfirstlane_b32 s{S_A}, v28\nv_readfirstlane_b32 s{S_B}, v29\ns_nop 3")
        g(f"s_and_b32 s{S_TAG}, s{S_A}, {TAGMASK}\ns_bfe_u32 s{S_TAG+1}, s{S_A}, 0xa000a\ns_bfe_u32 s{S_TAG+2}, s{S_A}, 0xa0014")
        g(f"s_lshr_b32 s{S_TAG+3}, s{S_A}, 30\ns_and_b32 s{S_B}, s{S_B}, 0xff\ns_lshl_b32 s{S_B}, s{S_B}, 2\ns_or_b32 s{S_TAG+3}, s{S_TAG+3}, s{S_B}")
        def publish_p1(lo, hi, only224):
            Lsk=g.new("Lsk")
            if only224: g(f"s_cmp_ge_u32 s2, 224\ns_cbranch_scc1 {Lsk}")
            g(f"s_cmp_lt_u32 s{S_WAVE}, {lo}\ns_cbranch_scc1 {Lsk}\ns_cmp_ge_u32 s{S_WAVE}, {hi}\ns_cbranch_scc1 {Lsk}")
            g(f"s_lshr_b32 s{S_A}, s{S_WAVE}, 1\ns_and_b32 s{S_B}, s{S_WAVE}, 1\ns_lshl_b32 s{S_C}, s{S_A}, 14\ns_lshl_b32 s{S_D}, s{S_B}, 9\ns_add_u32 s{S_C}, s{S_C}, s{S_D}")
            g(f"v_lshlrev_b32 v8, 10, v1\nv_lshl_add_u32 v8, v3, 7, v8\nv_lshl_add_u32 v8, v2, 4, v8\nv_add_u32 v8, s{S_C}, v8")
            n=0
            for wv in range(4):
                for e in range(2):
                    g(f"ds_read_b128 v[{32+4*n}:{35+4*n}], v8 offset:{LDS_DUMP+wv*4096+e*256}"); n+=1
            g(f"s_cmp_eq_u32 s{S_A}, 1\ns_cselect_b32 s{S_E}, 2, 0\ns_cmp_eq_u32 s{S_A}, 2\ns_cselect_b32 s{S_E}, 5, s{S_E}\ns_add_u32 s{S_E}, s{S_E}, s{S_CS}\ns_and_b32 s{S_E}, s{S_E}, 7\ns_and_b32 s{S_F}, s{S_CS}, 0xf8\ns_or_b32 s{S_E}, s{S_E}, s{S_F}")
            g(f"s_lshl_b32 s{S_C}, s{S_A}, 19\ns_lshl_b32 s{S_D}, s{S_KS}, 17\ns_add_u32 s{S_C}, s{S_C}, s{S_D}\ns_lshl_b32 s{S_D}, s{S_E}, 8\ns_add_u32 s{S_C}, s{S_C}, s{S_D}\ns_lshl_b32 s{S_D}, s{S_B}, 4\ns_add_u32 s{S_C}, s{S_C}, s{S_D}")
            g("v_lshlrev_b32 v9, 14, v2\nv_lshl_add_u32 v9, v3, 7, v9\nv_lshl_add_u32 v9, v1, 5, v9")
            g("s_waitcnt lgkmcnt(0)")
            for r in range(4):
                g(f"v_add_f32 v{24+r}, v{32+r}, v{36+r}")
                for n in range(2,8): g(f"v_add_f32 v{24+r}, v{24+r}, v{32+4*n+r}")
            tag4(24,0xff)
            g(f"buffer_store_dwordx4 v[24:27], v9, s[{R_WS}:{R_WS+3}], s{S_C} offen sc1")
            g.label(Lsk)
        if grp==0:
            publish_p1(0,2,False); publish_p1(2,4,True)
        else: publish_p1(4,6,True)
        stamp()
        def lds_qh_addr():
            g(f"s_lshl_b32 s{S_B}, s{S_W4}, 6\nv_add_u32 v12, s{S_B}, v0")
            g("v_lshrrev_b32 v14, 4, v12\nv_lshlrev_b32 v14, 7, v14\nv_lshl_add_u32 v14, v3, 6, v14\nv_lshl_add_u32 v14, v2, 1, v14")
        if grp==0:
            gather_check(lambda: st.need("g1"), gitems, gregs, 8, 9, 10, 0xff)
            lds_qh_addr()
            for r in range(4): sum4(UA+r)
            write4(UA,14,LDS_QS)
        else:
            Lskh=g.new("Lskh")
            st.pump(st.m["g1"]+AH-st.n)
            g(f"s_cmp_ge_u32 s2, 224\ns_cbranch_scc1 {Lskh}")
            gather_check(lambda: st.need("g1"), gitems, gregs, 8, 9, 10, 0xff)
            lds_qh_addr()
            H=UB
            for m in range(2):
                for r in range(4): sum4(H+16*m+r)
            rnd2(g,H,H+1,8); rnd2(g,H+2,H+3,8); rnd2(g,H+16,H+17,8); rnd2(g,H+18,H+19,8)
            for r in range(4):
                g(f"v_mul_f32 v{H+r}, 0xbfb8aa3b, v{H+r}\nv_exp_f32 v{H+r}, v{H+r}\ns_nop 0\nv_add_f32 v{H+r}, 1.0, v{H+r}\nv_rcp_f32 v{H+r}, v{H+r}\ns_nop 0")
            rnd2(g,H,H+1,8); rnd2(g,H+2,H+3,8)
            for r in range(4): g(f"v_mul_f32 v{H+r}, v{H+r}, v{H+16+r}")
            write4(H,14,LDS_HS)
            g.label(Lskh)
        if D2: st.D=D2; st.AH=D2; st.pump(D2-AH)
        stamp()
        g("s_waitcnt lgkmcnt(0)\ns_barrier")
        g("v_lshlrev_b32 v8, 8, v2\nv_lshl_add_u32 v8, v1, 4, v8")
        for kk in range(4):
            g(f"ds_read_b128 v[{BOP+4*kk}:{BOP+4*kk+3}], v8 offset:{LDS_QS+kk*64}")
        st.pump(2)
        c=min(63,st.n-st.m["K1"]); g(f"s_waitcnt vmcnt({c}) lgkmcnt(0)")
        for t in range(2):
            u=KU[t]
            for kk in range(4):
                for T in range(2):
                    a=ACC+4*(2*t+T)
                    c="0" if kk==0 else f"v[{a}:{a+3}]"
                    g(f"v_mfma_f32_16x16x32_bf16 v[{a}:{a+3}], v[{u+16*T+4*kk}:{u+16*T+4*kk+3}], v[{BOP+4*kk}:{BOP+4*kk+3}], {c}")
        st.pump(2)
        g("s_nop 7")
        NS=16
        if mimic:
            g(f"s_mov_b32 s{S_A}, 0x3db504f3")
            for i in range(0,NS,2):
                a=ACC+i
                rnd2(g,a,a+1,8)
                g(f"v_mul_f32 v{a}, s{S_A}, v{a}\nv_mul_f32 v{a+1}, s{S_A}, v{a+1}")
                rnd2(g,a,a+1,8)
            g(f"s_mov_b32 s{S_C2}, 0x3fb8aa3b")
        else:
            g(f"s_mov_b32 s{S_C2}, 0x3e0293ee")
        g(f"v_max3_f32 v8, v{ACC}, v{ACC+1}, v{ACC+2}")
        for i in range(3,NS-1,2): g(f"v_max3_f32 v8, v8, v{ACC+i}, v{ACC+i+1}")
        g(f"v_max_f32 v8, v8, v{ACC+NS-1}")
        g("v_mov_b32 v9, v8\ns_nop 1\nv_permlane16_swap_b32 v8, v9\ns_nop 1\nv_max_f32 v8, v8, v9\nv_mov_b32 v9, v8\ns_nop 1\nv_permlane32_swap_b32 v8, v9\ns_nop 1\nv_max_f32 v8, v8, v9")
        g(f"v_mul_f32 v8, s{S_C2}, v8")
        for i in range(NS): g(f"v_fma_f32 v{ACC+i}, v{ACC+i}, s{S_C2}, -v8")
        for i in range(NS): g(f"v_exp_f32 v{ACC+i}, v{ACC+i}")
        g("s_nop 0")
        for i in range(NS//2): g(f"v_cvt_pk_bf16_f32 v{BOP+i}, v{ACC+2*i}, v{ACC+2*i+1}")
        g("v_mov_b32 v9, 0")
        for i in range(NS//2):
            g(f"v_lshlrev_b32 v10, 16, v{BOP+i}\nv_and_b32 v11, 0xffff0000, v{BOP+i}\nv_add_f32 v9, v9, v10\nv_add_f32 v9, v9, v11")
        g("v_mov_b32 v10, v9\ns_nop 1\nv_permlane16_swap_b32 v9, v10\ns_nop 1\nv_add_f32 v9, v9, v10\nv_mov_b32 v10, v9\ns_nop 1\nv_permlane32_swap_b32 v9, v10\ns_nop 1\nv_add_f32 v9, v9, v10")
        g(f"v_lshlrev_b32 v10, 3, v0\ns_lshl_b32 s{S_B}, s{S_WAVE}, 6\nv_add_u32 v10, s{S_B}, v10\ns_mov_b64 exec, 0xff")
        g(f"ds_write_b64 v10, v[8:9] offset:{LDS_MLD}\ns_mov_b64 exec, -1\ns_nop 1")
        stamp()
        st.need("V0"); unit_compute(g,VU[0],BOP,True)
        st.D=DL
        st.need("V1",ah=16); unit_compute(g,VU[1],BOP+4,False)
        assert not st.q
        dump_acc(g,S_MW,S_WAVE,0,LDS_ADUMP)
        stamp()
        g("s_waitcnt lgkmcnt(0)\ns_barrier")
        g(f"s_lshl_b32 s{S_B}, s{S_WAVE}, 3\nv_mov_b32 v8, s{S_B}")
        for wv in range(8): g(f"ds_read_b64 v[{16+2*wv}:{17+2*wv}], v8 offset:{LDS_MLD+64*wv}")
        g(f"v_lshrrev_b32 v9, 5, v0\nv_bfe_u32 v10, v0, 3, 2\nv_lshlrev_b32 v11, 14, v9\nv_lshl_add_u32 v11, v2, 9, v11\nv_lshl_add_u32 v11, v10, 7, v11\ns_lshl_b32 s{S_B}, s{S_WAVE}, 4\ns_add_u32 s{S_B}, s{S_B}, {LDS_ADUMP}\nv_add_u32 v11, s{S_B}, v11")
        for n in range(4): g(f"ds_read_b128 v[{32+4*n}:{35+4*n}], v11 offset:{4096*n}")
        g(f"v_mov_b32 v15, 0x{TAGMASK:x}")
        g("s_waitcnt lgkmcnt(4)")
        g("v_max3_f32 v48, v16, v18, v20\nv_max3_f32 v48, v48, v22, v24\nv_max3_f32 v48, v48, v26, v28\nv_max_f32 v48, v48, v30")
        g(f"v_bfi_b32 v48, v15, s{S_TAG}, v48")
        for wv in range(8): g(f"v_sub_f32 v{52+wv}, v{16+2*wv}, v48\nv_exp_f32 v{52+wv}, v{52+wv}")
        g("s_nop 0\nv_mul_f32 v49, v52, v17")
        for wv in range(1,8): g(f"v_fmac_f32 v49, v{52+wv}, v{17+2*wv}")
        g("v_cmp_lt_u32 vcc, 31, v0\ns_nop 1")
        for n in range(4): g(f"v_cndmask_b32 v{52+n}, v{52+n}, v{56+n}, vcc")
        g("s_waitcnt lgkmcnt(0)")
        for r in range(4):
            g(f"v_mul_f32 v{24+r}, v52, v{32+r}")
            for n in range(1,4): g(f"v_fmac_f32 v{24+r}, v{52+n}, v{32+4*n+r}")
        for r in range(4): g(f"v_mov_b32 v{28+r}, v{24+r}")
        g("s_nop 1")
        for r in range(4): g(f"v_permlane32_swap_b32 v{24+r}, v{28+r}")
        g("s_nop 1")
        for r in range(4): g(f"v_add_f32 v{24+r}, v{24+r}, v{28+r}")
        g("v_cndmask_b32 v24, v24, v48, vcc\nv_cndmask_b32 v25, v25, v49, vcc\nv_cndmask_b32 v26, v26, v48, vcc\nv_cndmask_b32 v27, v27, v49, vcc")
        g("v_lshlrev_b32 v9, 4, v0\nv_min_u32 v9, 512, v9")
        tag4(24)
        g(f"s_lshr_b32 s{S_A}, s2, 3\ns_lshl_b32 s{S_A}, s{S_A}, 3\ns_add_u32 s{S_A}, s{S_A}, s{S_WAVE}\ns_lshl_b32 s{S_A}, s{S_A}, 3\ns_and_b32 s{S_B}, s2, 7\ns_add_u32 s{S_A}, s{S_A}, s{S_B}\ns_mul_i32 s{S_A}, s{S_A}, {APS}\ns_add_u32 s{S_A}, s{S_A}, {WS_AP}")
        g("s_mov_b32 exec_hi, 1")
        st.op(f"buffer_store_dwordx4 v[24:27], v9, s[{R_WS}:{R_WS+3}], s{S_A} offen sc1")
        g("s_mov_b64 exec, -1")
        g(f"v_lshlrev_b32 v6, 8, v2\nv_lshl_add_u32 v6, v1, 4, v6\ns_lshl_b32 s{S_B}, s{S_W4}, 6\nv_add_u32 v6, s{S_B}, v6")
        stamp()
        def pub_quarter(region_base, wsbase):
            g(f"v_lshrrev_b32 v9, 3, v0\nv_lshlrev_b32 v10, 9, v9\nv_lshl_add_u32 v10, v2, 4, v10\ns_lshl_b32 s{S_B}, s{S_W4}, 7\nv_add_u32 v10, s{S_B}, v10")
            for n in range(4): g(f"ds_read_b128 v[{32+4*n}:{35+4*n}], v10 offset:{region_base+4096*n}")
            g(f"v_lshlrev_b32 v11, 12, v2\nv_lshl_add_u32 v11, v9, 4, v11")
            g(f"s_lshr_b32 s{S_E}, s2, 3\ns_lshl_b32 s{S_E}, s{S_E}, 15\ns_and_b32 s{S_F}, s2, 7\ns_lshl_b32 s{S_F}, s{S_F}, 9\ns_add_u32 s{S_E}, s{S_E}, s{S_F}\ns_add_u32 s{S_E}, s{S_E}, s{S_B}\ns_add_u32 s{S_E}, s{S_E}, {wsbase}")
            g("s_waitcnt lgkmcnt(0)")
            for r in range(4): g(f"v_add_f32 v{24+r}, v{32+r}, v{36+r}\nv_add_f32 v{28+r}, v{40+r}, v{44+r}\nv_add_f32 v{24+r}, v{24+r}, v{28+r}")
            tag4(24)
            g(f"buffer_store_dwordx4 v[24:27], v11, s[{R_WS}:{R_WS+3}], s{S_E} offen sc1")
        if grp==0:
            g(f"ds_read_b128 v[{BOP}:{BOP+3}], v6 offset:{LDS_HS}")
            st.need("L","lgkmcnt(0)")
            unit_compute(g,UA,BOP,True)
            dump_acc(g,S_MW,S_W4,LDS_DUMP+32768)
            g("s_waitcnt lgkmcnt(0)\ns_barrier")
            Ls=g.new("Lsd")
            g(f"s_cmp_ge_u32 s2, 224\ns_cbranch_scc1 {Ls}")
            pub_quarter(LDS_DUMP+32768, WS_DP)
            g.label(Ls)
            g(f"s_cmp_lg_u32 s{S_WAVE}, 0\ns_cbranch_scc1 L_b6only")
            g(f"s_lshr_b32 s{S_A}, s2, 5\ns_lshl_b32 s{S_A}, s{S_A}, 11\ns_and_b32 s{S_B}, s2, 7\ns_lshl_b32 s{S_B}, s{S_B}, 8\ns_add_u32 s{S_A}, s{S_A}, s{S_B}\ns_lshr_b32 s{S_B}, s2, 3\ns_and_b32 s{S_B}, s{S_B}, 3\ns_lshl_b32 s{S_B}, s{S_B}, 6\ns_add_u32 s{S_KB}, s{S_A}, s{S_B}")
            g("v_lshlrev_b32 v11, 1, v2")
            for r in range(4): g(f"buffer_load_ushort v{60+r}, v11, s[{R_X}:{R_X+3}], s{S_KB} offen offset:{16*r}")
            g(f"v_lshrrev_b32 v5, 3, v0\nv_lshlrev_b32 v6, 17, v5\nv_lshl_add_u32 v6, v2, 4, v6\ns_lshl_b32 s{S_E}, s{S_KB}, 1")
            g("v_cmp_gt_u32 vcc, 7, v5\nv_subrev_u32 v7, 0x20000, v6\ns_nop 1\nv_cndmask_b32 v7, v7, v6, vcc\nv_cndmask_b32 v13, 0, 1.0, vcc")
            stamp()
            g("s_barrier")
            fitems=[(f"s_add_u32 s{S_F}, s{S_E}, {WS_SP+i*32768}", f"buffer_load_dwordx4 v[{16+4*i}:{19+4*i}], v6, s[{R_WS}:{R_WS+3}], s{S_F} offen sc1") for i in range(4)]
            fitems+=[(f"s_add_u32 s{S_F}, s{S_E}, {WS_DP+i*32768}", f"buffer_load_dwordx4 v[{32+4*i}:{35+4*i}], v7, s[{R_WS}:{R_WS+3}], s{S_F} offen sc1") for i in range(4)]
            if FS: g(f"s_sleep {FS}")
            if SMP:
                masked_gather([([fitems[i]],[16+4*i]) for i in range(SMP)],8,9,10,SL2)
                masked_gather([([fitems[i]],[16+4*i]) for i in range(SMP,8)],8,9,10,0)
            else:
                masked_gather([([fitems[i]],[16+4*i]) for i in range(8)],8,9,10,SL2)
            stamp()
            for r in range(16): g(f"v_mul_f32 v{32+r}, v{32+r}, v13")
            for m in range(2):
                for r in range(4): sum4(16+16*m+r)
            regs=[16,17,18,19,32,33,34,35]
            g("s_nop 1")
            for r in regs: g(f"v_add_f32_dpp v{r}, v{r}, v{r} row_ror:8 row_mask:0xf bank_mask:0xf")
            for r in regs: g(f"v_mov_b32 v{r+4}, v{r}")
            g("s_nop 1")
            for r in regs: g(f"v_permlane16_swap_b32 v{r}, v{r+4}")
            g("s_nop 1")
            for r in regs: g(f"v_add_f32 v{r}, v{r}, v{r+4}")
            for r in regs: g(f"v_mov_b32 v{r+4}, v{r}")
            g("s_nop 1")
            for r in regs: g(f"v_permlane32_swap_b32 v{r}, v{r+4}")
            g("s_nop 1")
            for r in regs: g(f"v_add_f32 v{r}, v{r}, v{r+4}")
            rnd2(g,16,17,5); rnd2(g,18,19,5); rnd2(g,32,33,5); rnd2(g,34,35,5)
            for r in range(4):
                g(f"v_mul_f32 v{20+r}, 0xbfb8aa3b, v{32+r}\nv_exp_f32 v{20+r}, v{20+r}\ns_nop 0\nv_add_f32 v{20+r}, 1.0, v{20+r}\nv_rcp_f32 v{20+r}, v{20+r}\ns_nop 0\nv_mul_f32 v{32+r}, v{32+r}, v{20+r}")
            rnd2(g,32,33,5); rnd2(g,34,35,5)
            for r in range(4): g(f"v_mul_f32 v{16+r}, v{16+r}, v{32+r}")
            rnd2(g,16,17,5); rnd2(g,18,19,5)
            for r in range(4): g(f"v_lshlrev_b32 v{60+r}, 16, v{60+r}\nv_add_f32 v{16+r}, v{16+r}, v{60+r}")
            g("v_cvt_pk_bf16_f32 v20, v16, v17\nv_cvt_pk_bf16_f32 v21, v18, v19")
            g("s_mov_b64 exec, 0xff")
            g(f"buffer_store_short v20, v11, s[{R_OUT}:{R_OUT+3}], s{S_KB} offen\nbuffer_store_short_d16_hi v20, v11, s[{R_OUT}:{R_OUT+3}], s{S_KB} offen offset:16")
            g(f"buffer_store_short v21, v11, s[{R_OUT}:{R_OUT+3}], s{S_KB} offen offset:32\nbuffer_store_short_d16_hi v21, v11, s[{R_OUT}:{R_OUT+3}], s{S_KB} offen offset:48")
            g("s_mov_b64 exec, -1")
            stamp(True)
            stamp_out(0)
            g("s_endpgm")
        else:
            g(f"s_lshl_b32 s{S_B}, s{S_W4}, 6\nv_add_u32 v12, s{S_B}, v0")
            g(f"v_lshrrev_b32 v9, 5, v12\nv_and_b32 v10, 31, v12\ns_mov_b32 s{S_A}, {32*8*APS}\nv_mul_lo_u32 v13, v9, s{S_A}\nv_add_u32 v14, 512, v13\nv_lshl_add_u32 v13, v10, 4, v13")
            g(f"s_lshr_b32 s{S_E}, s2, 3\ns_mul_i32 s{S_E}, s{S_E}, {8*APS}\ns_add_u32 s{S_E}, s{S_E}, {WS_AP}")
            oitems=[(None,f"buffer_load_dwordx4 v[{96+4*sp}:{99+4*sp}], v14, s[{R_WS}:{R_WS+3}], s{S_E} offen offset:{APS*sp} sc1") for sp in range(8)]
            oitems+=[(None,f"buffer_load_dwordx4 v[{32+4*sp}:{35+4*sp}], v13, s[{R_WS}:{R_WS+3}], s{S_E} offen offset:{APS*sp} sc1") for sp in range(8)]
            mid=lambda: g("v_bfe_u32 v10, v0, 3, 2\nv_lshlrev_b32 v11, 8, v9\nv_lshl_add_u32 v11, v10, 6, v11\nv_lshl_add_u32 v11, v2, 1, v11")
            if TP==1:
                masked_gather([([oitems[sp]],[96+4*sp]) for sp in range(8)],8,12,15,SL1,mid=mid)
                masked_gather([([oitems[8+sp]],[32+4*sp]) for sp in range(8)],8,12,15,0)
            elif TP>=2:
                smp={2:[5],3:[3,5],4:[1,3,5,7]}[TP]
                masked_gather([([oitems[sp]],[96+4*sp]) for sp in smp],8,12,15,SL1,mid=mid)
                masked_gather([(([oitems[8+sp]],[32+4*sp]) if sp in smp else ([oitems[sp],oitems[8+sp]],[96+4*sp,32+4*sp])) for sp in range(8)],8,12,15,SL3)
            else:
                masked_gather([([oitems[sp],oitems[8+sp]],[96+4*sp,32+4*sp]) for sp in range(8)],8,9,10,SL1,mid=mid)
            stamp()
            g("v_max3_f32 v16, v96, v100, v104\nv_max3_f32 v16, v16, v108, v112\nv_max3_f32 v16, v16, v116, v120\nv_max_f32 v16, v16, v124")
            for sp in range(8): g(f"v_sub_f32 v{24+sp}, v{96+4*sp}, v16\nv_exp_f32 v{24+sp}, v{24+sp}")
            g("s_nop 0\nv_mul_f32 v17, v24, v97")
            for sp in range(1,8): g(f"v_fmac_f32 v17, v{24+sp}, v{97+4*sp}")
            g("v_rcp_f32 v18, v17\ns_nop 0\nv_fma_f32 v19, -v17, v18, 1.0\nv_fma_f32 v18, v19, v18, v18")
            for r in range(4):
                g(f"v_mul_f32 v{20+r}, v24, v{32+r}")
                for sp in range(1,8): g(f"v_fmac_f32 v{20+r}, v{24+sp}, v{32+4*sp+r}")
                g(f"v_mul_f32 v{20+r}, v{20+r}, v18")
            write4(20,11,LDS_OS)
            g("s_waitcnt lgkmcnt(0)\ns_barrier")
            g(f"ds_read_b128 v[{BOP}:{BOP+3}], v6 offset:{LDS_OS}")
            g("s_waitcnt vmcnt(0) lgkmcnt(0)")
            unit_compute(g,UA,BOP,True)
            dump_acc(g,S_MW,S_W4,LDS_DUMP)
            g("s_waitcnt lgkmcnt(0)\ns_barrier")
            pub_quarter(LDS_DUMP, WS_SP)
            stamp(True)
            stamp_out(1)
            g("s_endpgm")
    program(0)
    g.label("L_g1")
    program(1)
    g.label("L_b6only")
    g("s_barrier")
    g.label("L_end")
    g("s_endpgm")
    tail=f""".section .rodata,"a"
.p2align 6
.amdhsa_kernel {KN}
  .amdhsa_next_free_vgpr 256
  .amdhsa_next_free_sgpr 102
  .amdhsa_accum_offset 256
  .amdhsa_group_segment_fixed_size 0
  .amdhsa_kernarg_size 96
  .amdhsa_user_sgpr_count 2
  .amdhsa_user_sgpr_kernarg_segment_ptr 1
  .amdhsa_system_sgpr_workgroup_id_x 1
.end_amdhsa_kernel
"""
    return hdr+g.text()+tail

if __name__=="__main__":
    out = sys.argv[1] if len(sys.argv)>1 else "recurrent_scan__gqa_block_cached__glu_gated_glu__decode.s"
    kw={}
    for a in sys.argv[2:]:
        if a=="stamps": kw["stamps"]=1
        elif a=="lite": kw["stamps"]=2
        elif "=" in a:
            k,v=a.split("="); kw[k]=int(v)
    open(out,"w").write(gen(**kw))
```

```python
import sys
KN="recurrent_scan__gqa_block_cached__glu_gated_glu__decode_kernel"

class G:
    def __init__(s): s.o=[]; s.lbl=0
    def __call__(s, t):
        for line in t.strip("\n").split("\n"):
            s.o.append("    "+line.strip())
    def label(s, n): s.o.append(n+":")
    def new(s, p="L"):
        s.lbl+=1; return f"{p}_{s.lbl}"
    def text(s): return "\n".join(s.o)+"\n"

LDS_DUMP=0; LDS_XN=49152; LDS_QS=53248; LDS_HS=55296; LDS_OS=57344; LDS_MLD=59392; LDS_EP=59904
LDS_ADUMP=61440
LDS_TOTAL=61440+32768
WS_QP=0; WS_GP=0x80000; WS_UP=0x100000; WS_AP=0x200000; WS_SP=0x400000; WS_DP=0x500000; WS_ST=0x600000
APS=576
WS_BYTES=268435456
SPIN_MAX=100000
TAGBITS=10; TAGMASK=(1<<TAGBITS)-1; NTAG=(~TAGMASK)&0xffffffff

P_X=16;P_K=18;P_V=20;P_WQ=22;P_WO=24;P_BX=26;P_G=28;P_U=30;P_D=32;P_OUT=34;P_DBG=36;P_WS=38
R_K=40;R_V=44;R_A=48;R_B=52;R_L=56;R_X=60;R_WS=64;R_DBG=68;R_OUT=72
S_WAVE=76; S_T=77; S_SELLO=78; S_SELHI=79; S_KS=80; S_CS=81
S_A=82;S_B=83;S_C=84;S_D=85;S_E=86;S_F=87;S_SPIN=88;S_KB=89;S_LB=90;S_C2=91
S_TAG=92; S_MN=96; S_MW=98; S_W4=100; S_XB=101
S_AB=16; S_BB=17; S_GB=18
ACC=32; BOP=16; TA=8; TB=12
UA=64; UB=96; KU=[128,160]; VU=[192,224]

def srd(g, r, p, nbytes):
    g(f"s_mov_b32 s{r}, s{p}\ns_and_b32 s{r+1}, s{p+1}, 0xffff\ns_mov_b32 s{r+2}, {nbytes}\ns_mov_b32 s{r+3}, 0x20000")

class Stream:
    def __init__(s,g,D,AH,GR=2): s.g=g; s.n=0; s.q=[]; s.D=D; s.AH=AH; s.GR=GR; s.m={}; s.total=0
    def add(s,pre,text): s.q.append((pre,text)); s.total+=1
    def qmark(s,name): s.m[name]=s.total
    def op(s,text):
        assert not s.q
        s.g(text); s.n+=1; s.total+=1
    def pump(s,k,paced=True):
        k=min(k,len(s.q)); i=0
        while i<k:
            c=min(s.GR,k-i)
            if paced and s.n > s.D-c: s.g(f"s_waitcnt vmcnt({s.D-c})")
            for _ in range(c):
                pre,text=s.q.pop(0)
                if pre: s.g(pre)
                s.g(text); s.n+=1
            i+=c
    def need(s,name,extra="",ah=None):
        tgt=s.m[name]; ah=s.AH if ah is None else ah
        s.pump(max(0,tgt+ah-s.n))
        c=min(63,s.n-tgt); s.g(f"s_waitcnt vmcnt({c}) {extra}")

def unit_loads(st, dst, rsrd, vaddr, sbase, offs, flags, name):
    for j,off in enumerate(offs):
        hi=off & ~0xfff; lo=off & 0xfff
        if hi==0: pre=None; sreg=f"s{sbase}"
        else: pre=f"s_add_u32 s{S_T}, s{sbase}, {hi}"; sreg=f"s{S_T}"
        st.add(pre,f"buffer_load_dwordx4 v[{dst+4*j}:{dst+4*j+3}], v{vaddr}, s[{rsrd}:{rsrd+3}], {sreg} offen offset:{lo} {flags}")
    st.qmark(name)

def unit_compute(g, u, bop, first):
    def perms(t, jp):
        q=jp>>1; sel=S_SELHI if jp&1 else S_SELLO
        for i in range(4):
            g(f"v_perm_b32 v{t+i}, v{u+4*(2*i+1)+q}, v{u+4*(2*i)+q}, s{sel}")
    def mf(t, jp):
        c = "0" if first else f"v[{ACC+4*jp}:{ACC+4*jp+3}]"
        g(f"v_mfma_f32_16x16x32_bf16 v[{ACC+4*jp}:{ACC+4*jp+3}], v[{t}:{t+3}], v[{bop}:{bop+3}], {c}")
    T=[TA,TB]
    perms(T[0],0)
    for jp in range(8):
        if jp<7: perms(T[(jp+1)&1], jp+1)
        else: g("s_nop 1")
        mf(T[jp&1], jp)

def dump_acc(g, mask, swave, base, vbase=0):
    g(f"s_lshl_b32 s{S_B}, s{swave}, 12\ns_add_u32 s{S_B}, s{S_B}, {vbase}\nv_lshlrev_b32 v8, 7, v1\nv_lshl_add_u32 v8, v2, 4, v8\nv_add_u32 v8, s{S_B}, v8")
    g(f"s_mov_b64 exec, s[{mask}:{mask+1}]")
    g("s_nop 5")
    for jp in range(8):
        g(f"ds_write_b128 v8, v[{ACC+4*jp}:{ACC+4*jp+3}] offset:{base+jp*512}")
    g("s_mov_b64 exec, -1")

def rnd2(g,a,b,t):
    g(f"v_cvt_pk_bf16_f32 v{t}, v{a}, v{b}\nv_lshlrev_b32 v{a}, 16, v{t}\nv_and_b32 v{b}, 0xffff0000, v{t}")

def gen(mimic=True, nt="nt", stamps=False, D=4, AH=4, GR=2, DL=8, gpos=1, D2=0, SL1=4, SL2=2, FS=0, TP=0, SMP=0, SL3=0, LL=0):
    g=G()
    hdr=f"""; fused persistent decode kernel: 256 WGs x 8 streaming waves, tagged cross-WG hand-offs
; @launch grid=(256,1,1) block=(512,1,1) lds={LDS_TOTAL}
.amdgcn_target "amdgcn-amd-amdhsa--gfx950"
.text
.globl {KN}
.p2align 8
.type {KN},@function
{KN}:
"""
    stc={'n':0}
    def stamp(always=False):
        if not stamps: return
        if stamps==2 and not always: return
        assert stc['n']<11
        g(f"s_memrealtime s[14:15]\ns_waitcnt lgkmcnt(0)\ns_mov_b32 s{3+stc['n']}, s14"); stc['n']+=1
    def stamp_out(grp):
        if not stamps: return
        L=g.new("Lso")
        g(f"s_cmp_lg_u32 s{S_W4}, 0\ns_cbranch_scc1 {L}")
        g("s_mov_b64 exec, 1")
        g(f"s_lshl_b32 s{S_E}, s2, 7\ns_add_u32 s{S_E}, s{S_E}, {WS_ST+64*grp}\nv_mov_b32 v9, 0")
        for i in range(stc['n']):
            g(f"v_mov_b32 v8, s{3+i}\nbuffer_store_dword v8, v9, s[{R_WS}:{R_WS+3}], s{S_E} offen offset:{4*i}")
        g("s_mov_b64 exec, -1")
        g.label(L)
    g(f"s_cmp_ge_u32 s2, 256\ns_cbranch_scc1 L_end")
    g("s_load_dwordx16 s[16:31], s[0:1], 0\ns_load_dwordx8 s[32:39], s[0:1], 64")
    g(f"v_lshrrev_b32 v1, 6, v0\nv_and_b32 v0, 63, v0\ns_nop 0\nv_readfirstlane_b32 s{S_WAVE}, v1")
    g(f"s_mov_b32 s{S_SELLO}, 0x05040100\ns_mov_b32 s{S_SELHI}, 0x07060302")
    g(f"s_and_b32 s{S_KS}, s2, 3\ns_lshr_b32 s{S_CS}, s2, 2")
    g(f"s_nop 3\ns_and_b32 s{S_W4}, s{S_WAVE}, 3")
    g("v_lshrrev_b32 v1, 4, v0\nv_and_b32 v2, 7, v0\nv_bfe_u32 v3, v0, 3, 1\nv_and_b32 v9, 15, v0")
    g("v_lshlrev_b32 v11, 5, v3\nv_lshl_add_u32 v11, v1, 3, v11")
    g("v_lshlrev_b32 v10, 5, v0")
    g("v_lshlrev_b32 v4, 8, v9\nv_lshl_add_u32 v4, v1, 4, v4")
    g("v_lshlrev_b32 v5, 10, v1\nv_lshl_add_u32 v5, v9, 4, v5")
    g("v_lshlrev_b32 v6, 13, v11\nv_lshl_add_u32 v6, v2, 4, v6")
    g("v_mul_u32_u24 v7, 7168, v11\nv_lshl_add_u32 v7, v2, 4, v7")
    g(f"v_lshrrev_b32 v8, 1, v1\nv_cmp_eq_u32 s[{S_MN}:{S_MN+1}], v3, v8\nv_cmp_eq_u32 s[{S_MW}:{S_MW+1}], 0, v3")
    g(f"s_lshl_b32 s{S_XB}, s{S_WAVE}, 11")
    g("s_waitcnt lgkmcnt(0)")
    srd(g,R_X,P_X,16384)
    g(f"buffer_load_dwordx4 v[16:19], v10, s[{R_X}:{R_X+3}], s{S_XB} offen\nbuffer_load_dwordx4 v[20:23], v10, s[{R_X}:{R_X+3}], s{S_XB} offen offset:16")
    srd(g,R_WS,P_WS,WS_BYTES); srd(g,R_DBG,P_DBG,256); srd(g,R_OUT,P_OUT,16384)
    srd(g,R_K,P_K,33554432); srd(g,R_V,P_V,33554432)
    g(f"s_lshl_b32 s{S_KB}, s2, 17\ns_lshl_b32 s{S_B}, s{S_WAVE}, 14\ns_add_u32 s{S_KB}, s{S_KB}, s{S_B}")
    g(f"s_lshr_b32 s{S_LB}, s2, 3\ns_lshl_b32 s{S_LB}, s{S_LB}, 18\ns_and_b32 s{S_B}, s2, 7\ns_lshl_b32 s{S_B}, s{S_B}, 8\ns_add_u32 s{S_LB}, s{S_LB}, s{S_B}")
    g(f"s_lshl_b32 s{S_B}, s{S_W4}, 16\ns_add_u32 s{S_LB}, s{S_LB}, s{S_B}")
    g(f"s_cmp_ge_u32 s{S_WAVE}, 4\ns_cbranch_scc1 L_g1")

    koffs=lambda t:[t*8192+T*4096+kk*64 for T in range(2) for kk in range(4)]
    voffs=lambda t:[t*8192+j*256 for j in range(4)]+[t*8192+4096+j*256 for j in range(4)]

    def tag4(d, mask=TAGMASK):
        g(f"v_mov_b32 v15, 0x{mask:x}")
        for r in range(4): g(f"v_bfi_b32 v{d+r}, v15, s{S_TAG+r}, v{d+r}")
    def check(regs, acc, t1, t2, mask):
        g(f"v_mov_b32 v{acc}, 0")
        for q in regs:
            for r in (0,2):
                g(f"v_xor_b32 v{t1}, s{S_TAG+r}, v{q+r}\nv_xor_b32 v{t2}, s{S_TAG+r+1}, v{q+r+1}\nv_or3_b32 v{acc}, v{acc}, v{t1}, v{t2}")
        g(f"v_and_b32 v{acc}, {mask}, v{acc}\nv_cmp_ne_u32 vcc, 0, v{acc}")
    def gather_check(wait, items, regs, acc, t1, t2, mask=TAGMASK):
        Lc=g.new("Lchk"); Ld=g.new("Lok")
        g(f"s_mov_b32 s{S_SPIN}, 0")
        wait()
        g.label(Lc)
        check(regs,acc,t1,t2,mask)
        g(f"s_cbranch_vccz {Ld}")
        g(f"s_add_u32 s{S_SPIN}, s{S_SPIN}, 1\ns_cmp_ge_u32 s{S_SPIN}, {SPIN_MAX}\ns_cbranch_scc1 {Ld}")
        g("s_mov_b64 exec, vcc")
        for pre,t in items:
            if pre: g(pre)
            g(t)
        g(f"s_waitcnt vmcnt(0)\ns_mov_b64 exec, -1\ns_branch {Lc}")
        g.label(Ld)
    def masked_gather(groups, acc, t1, t2, sleep, first_wait="s_waitcnt vmcnt(0)", mid=None):
        Ll=g.new("Lmg"); Ld=g.new("Lmgd")
        for items,quads in groups:
            for pre,t in items:
                if pre: g(pre)
                g(t)
        if mid: mid()
        g(f"s_mov_b32 s{S_SPIN}, 0")
        g(first_wait)
        g.label(Ll)
        for i,(items,quads) in enumerate(groups):
            check(quads,acc,t1,t2,TAGMASK)
            g(f"s_nop 0\ns_mov_b64 s[{20+2*i}:{21+2*i}], vcc")
        g("s_or_b64 vcc, s[20:21], s[20:21]")
        for i in range(1,len(groups)): g(f"s_or_b64 vcc, vcc, s[{20+2*i}:{21+2*i}]")
        g(f"s_cbranch_scc0 {Ld}")
        g(f"s_add_u32 s{S_SPIN}, s{S_SPIN}, 1\ns_cmp_ge_u32 s{S_SPIN}, {SPIN_MAX}\ns_cbranch_scc1 {Ld}")
        if sleep: g(f"s_sleep {sleep}")
        for i,(items,quads) in enumerate(groups):
            Ls=g.new("Lmgs")
            g(f"s_mov_b64 exec, s[{20+2*i}:{21+2*i}]\ns_cbranch_execz {Ls}")
            for pre,t in items:
                if pre: g(pre)
                g(t)
            g.label(Ls)
        g(f"s_mov_b64 exec, -1\ns_waitcnt vmcnt(0)\ns_branch {Ll}")
        g.label(Ld)
    def sum4(a):
        g(f"v_add_f32 v{a}, v{a}, v{a+4}\nv_add_f32 v{a+8}, v{a+8}, v{a+12}\nv_add_f32 v{a}, v{a}, v{a+8}")
    def write4(a, va, base):
        g(f"v_cvt_pk_bf16_f32 v8, v{a}, v{a+1}\nv_cvt_pk_bf16_f32 v9, v{a+2}, v{a+3}")
        g(f"ds_write_b16 v{va}, v8 offset:{base}\nds_write_b16_d16_hi v{va}, v8 offset:{base+16}\nds_write_b16 v{va}, v9 offset:{base+32}\nds_write_b16_d16_hi v{va}, v9 offset:{base+48}")

    def program(grp):
        st=Stream(g,D,AH,GR); stc['n']=0
        st.n=2; st.total=2; st.m["x"]=2
        stamp(True)
        if grp==0:
            srd(g,R_A,P_WQ,8388608); srd(g,R_B,P_G,7340032); srd(g,R_L,P_D,7340032)
            g(f"s_cmp_ge_u32 s2, 224\ns_cselect_b32 s{R_B+2}, 0, s{R_B+2}\ns_cselect_b32 s{R_L+2}, 0, s{R_L+2}")
        else:
            srd(g,R_A,P_U,7340032); srd(g,R_L,P_WO,8388608)
            g(f"s_cmp_ge_u32 s2, 224\ns_cselect_b32 s{R_A+2}, 0, s{R_A+2}")
            Ln=g.new("Lnoat")
            g(f"s_cmp_lg_u32 s{S_WAVE}, 7\ns_cbranch_scc1 {Ln}\ns_cmp_lg_u32 s2, 0\ns_cbranch_scc1 {Ln}")
            g(f"s_memrealtime s[{S_TAG}:{S_TAG+1}]\ns_waitcnt lgkmcnt(0)\ns_or_b32 s{S_TAG+1}, s{S_TAG+1}, 0x80000000\nv_mov_b32 v28, s{S_TAG}\nv_mov_b32 v29, s{S_TAG+1}\nv_mov_b32 v12, 0\ns_mov_b64 exec, 1")
            g(f"buffer_store_dwordx2 v[28:29], v12, s[{R_DBG}:{R_DBG+3}], 0 offen sc0 sc1\ns_mov_b64 exec, -1")
            g.label(Ln)
        g(f"s_lshl_b32 s{S_A}, s{S_KS}, 8\ns_lshl_b32 s{S_B}, s{S_W4}, 6\ns_add_u32 s{S_A}, s{S_A}, s{S_B}")
        g(f"s_lshl_b32 s{S_C}, s{S_CS}, 7")
        g(f"s_lshl_b32 s{S_AB}, s{S_A}, 13\ns_add_u32 s{S_AB}, s{S_AB}, s{S_C}")
        rot = 2 if grp==0 else 5
        g(f"s_add_u32 s{S_C}, s{S_CS}, {rot}\ns_and_b32 s{S_C}, s{S_C}, 7\ns_and_b32 s{S_D}, s{S_CS}, 0xf8\ns_or_b32 s{S_C}, s{S_C}, s{S_D}\ns_lshl_b32 s{S_C}, s{S_C}, 7")
        g(f"s_mul_i32 s{S_BB}, s{S_A}, 7168\ns_add_u32 s{S_BB}, s{S_BB}, s{S_C}")
        if grp==0:
            g(f"s_lshr_b32 s{S_GB}, s2, 5\ns_lshl_b32 s{S_GB}, s{S_GB}, 14\ns_lshr_b32 s{S_F}, s2, 3\ns_and_b32 s{S_F}, s{S_F}, 3\ns_lshl_b32 s{S_F}, s{S_F}, 12\ns_add_u32 s{S_GB}, s{S_GB}, s{S_F}")
            gitems=[(f"s_add_u32 s{S_T}, s{S_GB}, {WS_QP+ks*131072}", f"buffer_load_dwordx4 v[{UA+4*ks}:{UA+3+4*ks}], v6, s[{R_WS}:{R_WS+3}], s{S_T} offen sc1") for ks in range(4)]
            gregs=[UA+4*i for i in range(4)]
        else:
            g(f"s_lshr_b32 s{S_GB}, s2, 3\ns_lshl_b32 s{S_GB}, s{S_GB}, 9")
            gitems=[(f"s_add_u32 s{S_T}, s{S_GB}, {base+ks*131072}", f"buffer_load_dwordx4 v[{UB+16*m+4*ks}:{UB+3+16*m+4*ks}], v6, s[{R_WS}:{R_WS+3}], s{S_T} offen sc1") for m,base in enumerate((WS_GP,WS_UP)) for ks in range(4)]
            gregs=[UB+4*i for i in range(8)]
        def addg():
            for it in gitems: st.add(*it)
            st.qmark("g1")
        if grp==0:
            unit_loads(st,UA,R_A,6,S_AB,[j*8192 for j in range(8)],nt,"A")
            unit_loads(st,UB,R_B,7,S_BB,[j*7168 for j in range(8)],nt,"B")
        else:
            unit_loads(st,UA,R_A,7,S_BB,[j*7168 for j in range(8)],nt,"A")
        unit_loads(st,KU[0],R_K,4,S_KB,koffs(0),nt,"K0")
        unit_loads(st,KU[1],R_K,4,S_KB,koffs(1),nt,"K1")
        if gpos==0: addg()
        unit_loads(st,VU[0],R_V,5,S_KB,voffs(0),nt,"V0")
        if gpos==1: addg()
        unit_loads(st,VU[1],R_V,5,S_KB,voffs(1),nt,"V1")
        if not LL: unit_loads(st,UA,R_L,7,S_LB,[j*2048 for j in range(8)],nt,"L")
        st.m["E"]=max(st.m["A"], 2+AH+1)
        st.pump(AH,paced=False)
        g(f"s_waitcnt vmcnt({AH})")
        for i in range(8):
            g(f"v_lshlrev_b32 v{32+2*i}, 16, v{16+i}\nv_and_b32 v{33+2*i}, 0xffff0000, v{16+i}")
        def red64(r,t):
            for m in ("quad_perm:[1,0,3,2]","quad_perm:[2,3,0,1]","row_half_mirror","row_mirror"):
                g(f"s_nop 1\nv_add_f32_dpp v{r}, v{r}, v{r} {m} row_mask:0xf bank_mask:0xf")
            g(f"v_mov_b32 v{t}, v{r}\ns_nop 1\nv_permlane16_swap_b32 v{r}, v{t}\ns_nop 1\nv_add_f32 v{r}, v{r}, v{t}")
            g(f"v_mov_b32 v{t}, v{r}\ns_nop 1\nv_permlane32_swap_b32 v{r}, v{t}\ns_nop 1\nv_add_f32 v{r}, v{r}, v{t}")
        g("v_add_f32 v8, v32, v33")
        for i in range(2,16): g(f"v_add_f32 v8, v8, v{32+i}")
        red64(8,9)
        g("v_mul_f32 v8, 0x3a800000, v8\nv_mov_b32 v13, 0")
        for i in range(16):
            g(f"v_sub_f32 v9, v{32+i}, v8\nv_fmac_f32 v13, v9, v9")
        red64(13,9)
        g("v_mul_f32 v13, 0x3a800000, v13")
        g("v_cvt_pk_bf16_f32 v12, v8, v13\nv_lshlrev_b32 v8, 16, v12\nv_and_b32 v13, 0xffff0000, v12")
        g("v_add_f32 v13, 0x3727c5ac, v13\nv_cvt_pk_bf16_f32 v13, v13, v13\nv_and_b32 v13, 0xffff0000, v13")
        g("v_sqrt_f32 v13, v13\ns_nop 0\nv_cvt_pk_bf16_f32 v13, v13, v13\nv_and_b32 v13, 0xffff0000, v13")
        g("v_rcp_f32 v12, v13\ns_nop 0\nv_fma_f32 v9, -v13, v12, 1.0\nv_fma_f32 v12, v9, v12, v12")
        for i in range(8):
            a=32+2*i
            g(f"v_sub_f32 v{a}, v{a}, v8\nv_sub_f32 v{a+1}, v{a+1}, v8\nv_cvt_pk_bf16_f32 v9, v{a}, v{a+1}")
            g(f"v_lshlrev_b32 v{a}, 16, v9\nv_and_b32 v{a+1}, 0xffff0000, v9")
            g(f"v_mul_f32 v{a}, v{a}, v12\nv_mul_f32 v{a+1}, v{a+1}, v12\nv_cvt_pk_bf16_f32 v{16+i}, v{a}, v{a+1}")
        g(f"v_cmp_eq_u32 vcc, s{S_KS}, v1\nv_and_b32 v9, 15, v0\nv_lshlrev_b32 v9, 5, v9\ns_lshl_b32 s{S_B}, s{S_WAVE}, 9\nv_add_u32 v9, s{S_B}, v9\ns_mov_b64 exec, vcc")
        g(f"ds_write_b128 v9, v[16:19] offset:{LDS_XN}\nds_write_b128 v9, v[20:23] offset:{LDS_XN+16}\ns_mov_b64 exec, -1")
        g(f"v_lshlrev_b32 v8, 9, v2\nv_lshl_add_u32 v8, v11, 1, v8\ns_lshl_b32 s{S_B}, s{S_W4}, 7\nv_add_u32 v8, s{S_B}, v8")
        stamp()
        g("s_waitcnt lgkmcnt(0)\ns_barrier")
        g(f"ds_read_b128 v[{BOP}:{BOP+3}], v8 offset:{LDS_XN}")
        if grp==1:
            Ln=g.new("Lnopl")
            g(f"v_mov_b32 v24, 0\ns_cmp_lg_u32 s{S_WAVE}, 7\ns_cbranch_scc1 {Ln}")
            g(f"buffer_load_dwordx2 v[28:29], v24, s[{R_DBG}:{R_DBG+3}], 0 offen sc0 sc1")
            g.label(Ln)
        st.need("E","lgkmcnt(0)")
        unit_compute(g,UA,BOP,True)
        dump_acc(g,S_MN,S_W4,LDS_DUMP+(0 if grp==0 else 32768))
        if grp==0:
            st.need("B")
            unit_compute(g,UB,BOP,True)
            dump_acc(g,S_MN,S_W4,LDS_DUMP+16384)
        else:
            Ln=g.new("Lnoep")
            g(f"s_cmp_lg_u32 s{S_WAVE}, 7\ns_cbranch_scc1 {Ln}")
            Lc=g.new("Lep"); Ld=g.new("Lepd")
            g(f"s_mov_b32 s{S_SPIN}, 0")
            g.label(Lc)
            g(f"v_readfirstlane_b32 s{S_B}, v29\ns_nop 3\ns_cmp_lt_i32 s{S_B}, 0\ns_cbranch_scc1 {Ld}")
            g(f"s_add_u32 s{S_SPIN}, s{S_SPIN}, 1\ns_cmp_ge_u32 s{S_SPIN}, {SPIN_MAX}\ns_cbranch_scc1 {Ld}")
            g(f"buffer_load_dwordx2 v[28:29], v24, s[{R_DBG}:{R_DBG+3}], 0 offen sc0 sc1\ns_waitcnt vmcnt(0)\ns_branch {Lc}")
            g.label(Ld)
            g(f"v_mov_b32 v8, {LDS_EP}\ns_mov_b64 exec, 1\nds_write_b64 v8, v[28:29]\ns_mov_b64 exec, -1")
            g.label(Ln)
            st.need("K0")
        g(f"s_lshl_b32 s{S_B}, s{S_W4}, 6\nv_add_u32 v12, s{S_B}, v0")
        if grp==0: g("v_lshlrev_b32 v6, 4, v12")
        else: g("v_lshrrev_b32 v6, 5, v12\nv_lshlrev_b32 v6, 14, v6\nv_and_b32 v9, 31, v12\nv_lshl_add_u32 v6, v9, 4, v6")
        g("v_and_b32 v9, 15, v0\nv_lshlrev_b32 v7, 14, v1\nv_lshl_add_u32 v7, v9, 4, v7")
        stamp()
        g("s_waitcnt lgkmcnt(0)\ns_barrier")
        g(f"v_mov_b32 v8, {LDS_EP}\nds_read_b64 v[28:29], v8\ns_waitcnt lgkmcnt(0)\nv_readfirstlane_b32 s{S_A}, v28\nv_readfirstlane_b32 s{S_B}, v29\ns_nop 3")
        g(f"s_and_b32 s{S_TAG}, s{S_A}, {TAGMASK}\ns_bfe_u32 s{S_TAG+1}, s{S_A}, 0xa000a\ns_bfe_u32 s{S_TAG+2}, s{S_A}, 0xa0014")
        g(f"s_lshr_b32 s{S_TAG+3}, s{S_A}, 30\ns_and_b32 s{S_B}, s{S_B}, 0xff\ns_lshl_b32 s{S_B}, s{S_B}, 2\ns_or_b32 s{S_TAG+3}, s{S_TAG+3}, s{S_B}")
        def publish_p1(lo, hi, only224):
            Lsk=g.new("Lsk")
            if only224: g(f"s_cmp_ge_u32 s2, 224\ns_cbranch_scc1 {Lsk}")
            g(f"s_cmp_lt_u32 s{S_WAVE}, {lo}\ns_cbranch_scc1 {Lsk}\ns_cmp_ge_u32 s{S_WAVE}, {hi}\ns_cbranch_scc1 {Lsk}")
            g(f"s_lshr_b32 s{S_A}, s{S_WAVE}, 1\ns_and_b32 s{S_B}, s{S_WAVE}, 1\ns_lshl_b32 s{S_C}, s{S_A}, 14\ns_lshl_b32 s{S_D}, s{S_B}, 9\ns_add_u32 s{S_C}, s{S_C}, s{S_D}")
            g(f"v_lshlrev_b32 v8, 10, v1\nv_lshl_add_u32 v8, v3, 7, v8\nv_lshl_add_u32 v8, v2, 4, v8\nv_add_u32 v8, s{S_C}, v8")
            n=0
            for wv in range(4):
                for e in range(2):
                    g(f"ds_read_b128 v[{32+4*n}:{35+4*n}], v8 offset:{LDS_DUMP+wv*4096+e*256}"); n+=1
            g(f"s_cmp_eq_u32 s{S_A}, 1\ns_cselect_b32 s{S_E}, 2, 0\ns_cmp_eq_u32 s{S_A}, 2\ns_cselect_b32 s{S_E}, 5, s{S_E}\ns_add_u32 s{S_E}, s{S_E}, s{S_CS}\ns_and_b32 s{S_E}, s{S_E}, 7\ns_and_b32 s{S_F}, s{S_CS}, 0xf8\ns_or_b32 s{S_E}, s{S_E}, s{S_F}")
            g(f"s_lshl_b32 s{S_C}, s{S_A}, 19\ns_lshl_b32 s{S_D}, s{S_KS}, 17\ns_add_u32 s{S_C}, s{S_C}, s{S_D}\ns_lshl_b32 s{S_D}, s{S_E}, 8\ns_add_u32 s{S_C}, s{S_C}, s{S_D}\ns_lshl_b32 s{S_D}, s{S_B}, 4\ns_add_u32 s{S_C}, s{S_C}, s{S_D}")
            g("v_lshlrev_b32 v9, 14, v2\nv_lshl_add_u32 v9, v3, 7, v9\nv_lshl_add_u32 v9, v1, 5, v9")
            g("s_waitcnt lgkmcnt(0)")
            for r in range(4):
                g(f"v_add_f32 v{24+r}, v{32+r}, v{36+r}")
                for n in range(2,8): g(f"v_add_f32 v{24+r}, v{24+r}, v{32+4*n+r}")
            tag4(24,0xff)
            g(f"buffer_store_dwordx4 v[24:27], v9, s[{R_WS}:{R_WS+3}], s{S_C} offen sc1")
            g.label(Lsk)
        if grp==0:
            publish_p1(0,2,False); publish_p1(2,4,True)
        else: publish_p1(4,6,True)
        stamp()
        def lds_qh_addr():
            g(f"s_lshl_b32 s{S_B}, s{S_W4}, 6\nv_add_u32 v12, s{S_B}, v0")
            g("v_lshrrev_b32 v14, 4, v12\nv_lshlrev_b32 v14, 7, v14\nv_lshl_add_u32 v14, v3, 6, v14\nv_lshl_add_u32 v14, v2, 1, v14")
        if grp==0:
            gather_check(lambda: st.need("g1"), gitems, gregs, 8, 9, 10, 0xff)
            lds_qh_addr()
            for r in range(4): sum4(UA+r)
            write4(UA,14,LDS_QS)
        else:
            Lskh=g.new("Lskh")
            st.pump(st.m["g1"]+AH-st.n)
            g(f"s_cmp_ge_u32 s2, 224\ns_cbranch_scc1 {Lskh}")
            gather_check(lambda: st.need("g1"), gitems, gregs, 8, 9, 10, 0xff)
            lds_qh_addr()
            H=UB
            for m in range(2):
                for r in range(4): sum4(H+16*m+r)
            rnd2(g,H,H+1,8); rnd2(g,H+2,H+3,8); rnd2(g,H+16,H+17,8); rnd2(g,H+18,H+19,8)
            for r in range(4):
                g(f"v_mul_f32 v{H+r}, 0xbfb8aa3b, v{H+r}\nv_exp_f32 v{H+r}, v{H+r}\ns_nop 0\nv_add_f32 v{H+r}, 1.0, v{H+r}\nv_rcp_f32 v{H+r}, v{H+r}\ns_nop 0")
            rnd2(g,H,H+1,8); rnd2(g,H+2,H+3,8)
            for r in range(4): g(f"v_mul_f32 v{H+r}, v{H+r}, v{H+16+r}")
            write4(H,14,LDS_HS)
            g.label(Lskh)
        if D2: st.D=D2; st.AH=D2; st.pump(D2-AH)
        stamp()
        g("s_waitcnt lgkmcnt(0)\ns_barrier")
        g("v_lshlrev_b32 v8, 8, v2\nv_lshl_add_u32 v8, v1, 4, v8")
        for kk in range(4):
            g(f"ds_read_b128 v[{BOP+4*kk}:{BOP+4*kk+3}], v8 offset:{LDS_QS+kk*64}")
        st.pump(2)
        c=min(63,st.n-st.m["K1"]); g(f"s_waitcnt vmcnt({c}) lgkmcnt(0)")
        for t in range(2):
            u=KU[t]
            for kk in range(4):
                for T in range(2):
                    a=ACC+4*(2*t+T)
                    c="0" if kk==0 else f"v[{a}:{a+3}]"
                    g(f"v_mfma_f32_16x16x32_bf16 v[{a}:{a+3}], v[{u+16*T+4*kk}:{u+16*T+4*kk+3}], v[{BOP+4*kk}:{BOP+4*kk+3}], {c}")
        st.pump(2)
        g("s_nop 7")
        NS=16
        if mimic:
            g(f"s_mov_b32 s{S_A}, 0x3db504f3")
            for i in range(0,NS,2):
                a=ACC+i
                rnd2(g,a,a+1,8)
                g(f"v_mul_f32 v{a}, s{S_A}, v{a}\nv_mul_f32 v{a+1}, s{S_A}, v{a+1}")
                rnd2(g,a,a+1,8)
            g(f"s_mov_b32 s{S_C2}, 0x3fb8aa3b")
        else:
            g(f"s_mov_b32 s{S_C2}, 0x3e0293ee")
        g(f"v_max3_f32 v8, v{ACC}, v{ACC+1}, v{ACC+2}")
        for i in range(3,NS-1,2): g(f"v_max3_f32 v8, v8, v{ACC+i}, v{ACC+i+1}")
        g(f"v_max_f32 v8, v8, v{ACC+NS-1}")
        g("v_mov_b32 v9, v8\ns_nop 1\nv_permlane16_swap_b32 v8, v9\ns_nop 1\nv_max_f32 v8, v8, v9\nv_mov_b32 v9, v8\ns_nop 1\nv_permlane32_swap_b32 v8, v9\ns_nop 1\nv_max_f32 v8, v8, v9")
        g(f"v_mul_f32 v8, s{S_C2}, v8")
        for i in range(NS): g(f"v_fma_f32 v{ACC+i}, v{ACC+i}, s{S_C2}, -v8")
        for i in range(NS): g(f"v_exp_f32 v{ACC+i}, v{ACC+i}")
        g("s_nop 0")
        for i in range(NS//2): g(f"v_cvt_pk_bf16_f32 v{BOP+i}, v{ACC+2*i}, v{ACC+2*i+1}")
        g("v_mov_b32 v9, 0")
        for i in range(NS//2):
            g(f"v_lshlrev_b32 v10, 16, v{BOP+i}\nv_and_b32 v11, 0xffff0000, v{BOP+i}\nv_add_f32 v9, v9, v10\nv_add_f32 v9, v9, v11")
        g("v_mov_b32 v10, v9\ns_nop 1\nv_permlane16_swap_b32 v9, v10\ns_nop 1\nv_add_f32 v9, v9, v10\nv_mov_b32 v10, v9\ns_nop 1\nv_permlane32_swap_b32 v9, v10\ns_nop 1\nv_add_f32 v9, v9, v10")
        g(f"v_lshlrev_b32 v10, 3, v0\ns_lshl_b32 s{S_B}, s{S_WAVE}, 6\nv_add_u32 v10, s{S_B}, v10\ns_mov_b64 exec, 0xff")
        g(f"ds_write_b64 v10, v[8:9] offset:{LDS_MLD}\ns_mov_b64 exec, -1\ns_nop 1")
        stamp()
        st.need("V0"); unit_compute(g,VU[0],BOP,True)
        st.D=DL
        st.need("V1",ah=16); unit_compute(g,VU[1],BOP+4,False)
        assert not st.q
        dump_acc(g,S_MW,S_WAVE,0,LDS_ADUMP)
        stamp()
        g("s_waitcnt lgkmcnt(0)\ns_barrier")
        g(f"s_lshl_b32 s{S_B}, s{S_WAVE}, 3\nv_mov_b32 v8, s{S_B}")
        for wv in range(8): g(f"ds_read_b64 v[{16+2*wv}:{17+2*wv}], v8 offset:{LDS_MLD+64*wv}")
        g(f"v_lshrrev_b32 v9, 5, v0\nv_bfe_u32 v10, v0, 3, 2\nv_lshlrev_b32 v11, 14, v9\nv_lshl_add_u32 v11, v2, 9, v11\nv_lshl_add_u32 v11, v10, 7, v11\ns_lshl_b32 s{S_B}, s{S_WAVE}, 4\ns_add_u32 s{S_B}, s{S_B}, {LDS_ADUMP}\nv_add_u32 v11, s{S_B}, v11")
        for n in range(4): g(f"ds_read_b128 v[{32+4*n}:{35+4*n}], v11 offset:{4096*n}")
        g(f"v_mov_b32 v15, 0x{TAGMASK:x}")
        g("s_waitcnt lgkmcnt(4)")
        g("v_max3_f32 v48, v16, v18, v20\nv_max3_f32 v48, v48, v22, v24\nv_max3_f32 v48, v48, v26, v28\nv_max_f32 v48, v48, v30")
        g(f"v_bfi_b32 v48, v15, s{S_TAG}, v48")
        for wv in range(8): g(f"v_sub_f32 v{52+wv}, v{16+2*wv}, v48\nv_exp_f32 v{52+wv}, v{52+wv}")
        g("s_nop 0\nv_mul_f32 v49, v52, v17")
        for wv in range(1,8): g(f"v_fmac_f32 v49, v{52+wv}, v{17+2*wv}")
        g("v_cmp_lt_u32 vcc, 31, v0\ns_nop 1")
        for n in range(4): g(f"v_cndmask_b32 v{52+n}, v{52+n}, v{56+n}, vcc")
        g("s_waitcnt lgkmcnt(0)")
        for r in range(4):
            g(f"v_mul_f32 v{24+r}, v52, v{32+r}")
            for n in range(1,4): g(f"v_fmac_f32 v{24+r}, v{52+n}, v{32+4*n+r}")
        for r in range(4): g(f"v_mov_b32 v{28+r}, v{24+r}")
        g("s_nop 1")
        for r in range(4): g(f"v_permlane32_swap_b32 v{24+r}, v{28+r}")
        g("s_nop 1")
        for r in range(4): g(f"v_add_f32 v{24+r}, v{24+r}, v{28+r}")
        g("v_cndmask_b32 v24, v24, v48, vcc\nv_cndmask_b32 v25, v25, v49, vcc\nv_cndmask_b32 v26, v26, v48, vcc\nv_cndmask_b32 v27, v27, v49, vcc")
        g("v_lshlrev_b32 v9, 4, v0\nv_min_u32 v9, 512, v9")
        tag4(24)
        g(f"s_lshr_b32 s{S_A}, s2, 3\ns_lshl_b32 s{S_A}, s{S_A}, 3\ns_add_u32 s{S_A}, s{S_A}, s{S_WAVE}\ns_lshl_b32 s{S_A}, s{S_A}, 3\ns_and_b32 s{S_B}, s2, 7\ns_add_u32 s{S_A}, s{S_A}, s{S_B}\ns_mul_i32 s{S_A}, s{S_A}, {APS}\ns_add_u32 s{S_A}, s{S_A}, {WS_AP}")
        g("s_mov_b32 exec_hi, 1")
        st.op(f"buffer_store_dwordx4 v[24:27], v9, s[{R_WS}:{R_WS+3}], s{S_A} offen sc1")
        g("s_mov_b64 exec, -1")
        if LL:
            unit_loads(st,UA,R_L,7,S_LB,[j*2048 for j in range(8)],nt,"L")
            st.pump(8,paced=False)
        g(f"v_lshlrev_b32 v6, 8, v2\nv_lshl_add_u32 v6, v1, 4, v6\ns_lshl_b32 s{S_B}, s{S_W4}, 6\nv_add_u32 v6, s{S_B}, v6")
        stamp()
        def pub_quarter(region_base, wsbase):
            g(f"v_lshrrev_b32 v9, 3, v0\nv_lshlrev_b32 v10, 9, v9\nv_lshl_add_u32 v10, v2, 4, v10\ns_lshl_b32 s{S_B}, s{S_W4}, 7\nv_add_u32 v10, s{S_B}, v10")
            for n in range(4): g(f"ds_read_b128 v[{32+4*n}:{35+4*n}], v10 offset:{region_base+4096*n}")
            g(f"v_lshlrev_b32 v11, 12, v2\nv_lshl_add_u32 v11, v9, 4, v11")
            g(f"s_lshr_b32 s{S_E}, s2, 3\ns_lshl_b32 s{S_E}, s{S_E}, 15\ns_and_b32 s{S_F}, s2, 7\ns_lshl_b32 s{S_F}, s{S_F}, 9\ns_add_u32 s{S_E}, s{S_E}, s{S_F}\ns_add_u32 s{S_E}, s{S_E}, s{S_B}\ns_add_u32 s{S_E}, s{S_E}, {wsbase}")
            g("s_waitcnt lgkmcnt(0)")
            for r in range(4): g(f"v_add_f32 v{24+r}, v{32+r}, v{36+r}\nv_add_f32 v{28+r}, v{40+r}, v{44+r}\nv_add_f32 v{24+r}, v{24+r}, v{28+r}")
            tag4(24)
            g(f"buffer_store_dwordx4 v[24:27], v11, s[{R_WS}:{R_WS+3}], s{S_E} offen sc1")
        if grp==0:
            g(f"ds_read_b128 v[{BOP}:{BOP+3}], v6 offset:{LDS_HS}")
            st.need("L","lgkmcnt(0)")
            unit_compute(g,UA,BOP,True)
            dump_acc(g,S_MW,S_W4,LDS_DUMP+32768)
            g("s_waitcnt lgkmcnt(0)\ns_barrier")
            Ls=g.new("Lsd")
            g(f"s_cmp_ge_u32 s2, 224\ns_cbranch_scc1 {Ls}")
            pub_quarter(LDS_DUMP+32768, WS_DP)
            g.label(Ls)
            g(f"s_cmp_lg_u32 s{S_WAVE}, 0\ns_cbranch_scc1 L_b6only")
            g(f"s_lshr_b32 s{S_A}, s2, 5\ns_lshl_b32 s{S_A}, s{S_A}, 11\ns_and_b32 s{S_B}, s2, 7\ns_lshl_b32 s{S_B}, s{S_B}, 8\ns_add_u32 s{S_A}, s{S_A}, s{S_B}\ns_lshr_b32 s{S_B}, s2, 3\ns_and_b32 s{S_B}, s{S_B}, 3\ns_lshl_b32 s{S_B}, s{S_B}, 6\ns_add_u32 s{S_KB}, s{S_A}, s{S_B}")
            g("v_lshlrev_b32 v11, 1, v2")
            for r in range(4): g(f"buffer_load_ushort v{60+r}, v11, s[{R_X}:{R_X+3}], s{S_KB} offen offset:{16*r}")
            g(f"v_lshrrev_b32 v5, 3, v0\nv_lshlrev_b32 v6, 17, v5\nv_lshl_add_u32 v6, v2, 4, v6\ns_lshl_b32 s{S_E}, s{S_KB}, 1")
            g("v_cmp_gt_u32 vcc, 7, v5\nv_subrev_u32 v7, 0x20000, v6\ns_nop 1\nv_cndmask_b32 v7, v7, v6, vcc\nv_cndmask_b32 v13, 0, 1.0, vcc")
            stamp()
            g("s_barrier")
            fitems=[(f"s_add_u32 s{S_F}, s{S_E}, {WS_SP+i*32768}", f"buffer_load_dwordx4 v[{16+4*i}:{19+4*i}], v6, s[{R_WS}:{R_WS+3}], s{S_F} offen sc1") for i in range(4)]
            fitems+=[(f"s_add_u32 s{S_F}, s{S_E}, {WS_DP+i*32768}", f"buffer_load_dwordx4 v[{32+4*i}:{35+4*i}], v7, s[{R_WS}:{R_WS+3}], s{S_F} offen sc1") for i in range(4)]
            if FS: g(f"s_sleep {FS}")
            if SMP:
                masked_gather([([fitems[i]],[16+4*i]) for i in range(SMP)],8,9,10,SL2)
                masked_gather([([fitems[i]],[16+4*i]) for i in range(SMP,8)],8,9,10,0)
            else:
                masked_gather([([fitems[i]],[16+4*i]) for i in range(8)],8,9,10,SL2)
            stamp()
            for r in range(16): g(f"v_mul_f32 v{32+r}, v{32+r}, v13")
            for m in range(2):
                for r in range(4): sum4(16+16*m+r)
            regs=[16,17,18,19,32,33,34,35]
            g("s_nop 1")
            for r in regs: g(f"v_add_f32_dpp v{r}, v{r}, v{r} row_ror:8 row_mask:0xf bank_mask:0xf")
            for r in regs: g(f"v_mov_b32 v{r+4}, v{r}")
            g("s_nop 1")
            for r in regs: g(f"v_permlane16_swap_b32 v{r}, v{r+4}")
            g("s_nop 1")
            for r in regs: g(f"v_add_f32 v{r}, v{r}, v{r+4}")
            for r in regs: g(f"v_mov_b32 v{r+4}, v{r}")
            g("s_nop 1")
            for r in regs: g(f"v_permlane32_swap_b32 v{r}, v{r+4}")
            g("s_nop 1")
            for r in regs: g(f"v_add_f32 v{r}, v{r}, v{r+4}")
            rnd2(g,16,17,5); rnd2(g,18,19,5); rnd2(g,32,33,5); rnd2(g,34,35,5)
            for r in range(4):
                g(f"v_mul_f32 v{20+r}, 0xbfb8aa3b, v{32+r}\nv_exp_f32 v{20+r}, v{20+r}\ns_nop 0\nv_add_f32 v{20+r}, 1.0, v{20+r}\nv_rcp_f32 v{20+r}, v{20+r}\ns_nop 0\nv_mul_f32 v{32+r}, v{32+r}, v{20+r}")
            rnd2(g,32,33,5); rnd2(g,34,35,5)
            for r in range(4): g(f"v_mul_f32 v{16+r}, v{16+r}, v{32+r}")
            rnd2(g,16,17,5); rnd2(g,18,19,5)
            for r in range(4): g(f"v_lshlrev_b32 v{60+r}, 16, v{60+r}\nv_add_f32 v{16+r}, v{16+r}, v{60+r}")
            g("v_cvt_pk_bf16_f32 v20, v16, v17\nv_cvt_pk_bf16_f32 v21, v18, v19")
            g("s_mov_b64 exec, 0xff")
            g(f"buffer_store_short v20, v11, s[{R_OUT}:{R_OUT+3}], s{S_KB} offen\nbuffer_store_short_d16_hi v20, v11, s[{R_OUT}:{R_OUT+3}], s{S_KB} offen offset:16")
            g(f"buffer_store_short v21, v11, s[{R_OUT}:{R_OUT+3}], s{S_KB} offen offset:32\nbuffer_store_short_d16_hi v21, v11, s[{R_OUT}:{R_OUT+3}], s{S_KB} offen offset:48")
            g("s_mov_b64 exec, -1")
            stamp(True)
            stamp_out(0)
            g("s_endpgm")
        else:
            g(f"s_lshl_b32 s{S_B}, s{S_W4}, 6\nv_add_u32 v12, s{S_B}, v0")
            g(f"v_lshrrev_b32 v9, 5, v12\nv_and_b32 v10, 31, v12\ns_mov_b32 s{S_A}, {32*8*APS}\nv_mul_lo_u32 v13, v9, s{S_A}\nv_add_u32 v14, 512, v13\nv_lshl_add_u32 v13, v10, 4, v13")
            g(f"s_lshr_b32 s{S_E}, s2, 3\ns_mul_i32 s{S_E}, s{S_E}, {8*APS}\ns_add_u32 s{S_E}, s{S_E}, {WS_AP}")
            oitems=[(None,f"buffer_load_dwordx4 v[{96+4*sp}:{99+4*sp}], v14, s[{R_WS}:{R_WS+3}], s{S_E} offen offset:{APS*sp} sc1") for sp in range(8)]
            oitems+=[(None,f"buffer_load_dwordx4 v[{32+4*sp}:{35+4*sp}], v13, s[{R_WS}:{R_WS+3}], s{S_E} offen offset:{APS*sp} sc1") for sp in range(8)]
            mid=lambda: g("v_bfe_u32 v10, v0, 3, 2\nv_lshlrev_b32 v11, 8, v9\nv_lshl_add_u32 v11, v10, 6, v11\nv_lshl_add_u32 v11, v2, 1, v11")
            if TP==1:
                masked_gather([([oitems[sp]],[96+4*sp]) for sp in range(8)],8,12,15,SL1,mid=mid)
                masked_gather([([oitems[8+sp]],[32+4*sp]) for sp in range(8)],8,12,15,0)
            elif TP>=2:
                smp={2:[5],3:[3,5],4:[1,3,5,7]}[TP]
                masked_gather([([oitems[sp]],[96+4*sp]) for sp in smp],8,12,15,SL1,mid=mid)
                masked_gather([(([oitems[8+sp]],[32+4*sp]) if sp in smp else ([oitems[sp],oitems[8+sp]],[96+4*sp,32+4*sp])) for sp in range(8)],8,12,15,SL3)
            else:
                masked_gather([([oitems[sp],oitems[8+sp]],[96+4*sp,32+4*sp]) for sp in range(8)],8,9,10,SL1,mid=mid)
            stamp()
            g("v_max3_f32 v16, v96, v100, v104\nv_max3_f32 v16, v16, v108, v112\nv_max3_f32 v16, v16, v116, v120\nv_max_f32 v16, v16, v124")
            for sp in range(8): g(f"v_sub_f32 v{24+sp}, v{96+4*sp}, v16\nv_exp_f32 v{24+sp}, v{24+sp}")
            g("s_nop 0\nv_mul_f32 v17, v24, v97")
            for sp in range(1,8): g(f"v_fmac_f32 v17, v{24+sp}, v{97+4*sp}")
            g("v_rcp_f32 v18, v17\ns_nop 0\nv_fma_f32 v19, -v17, v18, 1.0\nv_fma_f32 v18, v19, v18, v18")
            for r in range(4):
                g(f"v_mul_f32 v{20+r}, v24, v{32+r}")
                for sp in range(1,8): g(f"v_fmac_f32 v{20+r}, v{24+sp}, v{32+4*sp+r}")
                g(f"v_mul_f32 v{20+r}, v{20+r}, v18")
            write4(20,11,LDS_OS)
            g("s_waitcnt lgkmcnt(0)\ns_barrier")
            g(f"ds_read_b128 v[{BOP}:{BOP+3}], v6 offset:{LDS_OS}")
            g("s_waitcnt vmcnt(0) lgkmcnt(0)")
            unit_compute(g,UA,BOP,True)
            dump_acc(g,S_MW,S_W4,LDS_DUMP)
            g("s_waitcnt lgkmcnt(0)\ns_barrier")
            pub_quarter(LDS_DUMP, WS_SP)
            stamp(True)
            stamp_out(1)
            g("s_endpgm")
    program(0)
    g.label("L_g1")
    program(1)
    g.label("L_b6only")
    g("s_barrier")
    g.label("L_end")
    g("s_endpgm")
    tail=f""".section .rodata,"a"
.p2align 6
.amdhsa_kernel {KN}
  .amdhsa_next_free_vgpr 256
  .amdhsa_next_free_sgpr 102
  .amdhsa_accum_offset 256
  .amdhsa_group_segment_fixed_size 0
  .amdhsa_kernarg_size 96
  .amdhsa_user_sgpr_count 2
  .amdhsa_user_sgpr_kernarg_segment_ptr 1
  .amdhsa_system_sgpr_workgroup_id_x 1
.end_amdhsa_kernel
"""
    return hdr+g.text()+tail

if __name__=="__main__":
    out = sys.argv[1] if len(sys.argv)>1 else "recurrent_scan__gqa_block_cached__glu_gated_glu__decode.s"
    kw={}
    for a in sys.argv[2:]:
        if a=="stamps": kw["stamps"]=1
        elif a=="lite": kw["stamps"]=2
        elif "=" in a:
            k,v=a.split("="); kw[k]=int(v)
    open(out,"w").write(gen(**kw))
```

```python
import sys
KN="recurrent_scan__gqa_block_cached__glu_gated_glu__decode_kernel"

class G:
    def __init__(s): s.o=[]; s.lbl=0
    def __call__(s, t):
        for line in t.strip("\n").split("\n"):
            s.o.append("    "+line.strip())
    def label(s, n): s.o.append(n+":")
    def new(s, p="L"):
        s.lbl+=1; return f"{p}_{s.lbl}"
    def text(s): return "\n".join(s.o)+"\n"

LDS_DUMP=0; LDS_XN=49152; LDS_QS=53248; LDS_HS=55296; LDS_OS=57344; LDS_MLD=59392; LDS_EP=59904
LDS_ADUMP=61440
LDS_TOTAL=61440+32768
WS_QP=0; WS_GP=0x80000; WS_UP=0x100000; WS_AP=0x200000; WS_SP=0x400000; WS_DP=0x500000; WS_ST=0x600000
APS=576
WS_BYTES=268435456
SPIN_MAX=100000
TAGBITS=10; TAGMASK=(1<<TAGBITS)-1; NTAG=(~TAGMASK)&0xffffffff

P_X=16;P_K=18;P_V=20;P_WQ=22;P_WO=24;P_BX=26;P_G=28;P_U=30;P_D=32;P_OUT=34;P_DBG=36;P_WS=38
R_K=40;R_V=44;R_A=48;R_B=52;R_L=56;R_X=60;R_WS=64;R_DBG=68;R_OUT=72
S_WAVE=76; S_T=77; S_SELLO=78; S_SELHI=79; S_KS=80; S_CS=81
S_A=82;S_B=83;S_C=84;S_D=85;S_E=86;S_F=87;S_SPIN=88;S_KB=89;S_LB=90;S_C2=91
S_TAG=92; S_MN=96; S_MW=98; S_W4=100; S_XB=101
S_AB=16; S_BB=17; S_GB=18
ACC=32; BOP=16; TA=8; TB=12
UA=64; UB=96; KU=[128,160]; VU=[192,224]

def srd(g, r, p, nbytes):
    g(f"s_mov_b32 s{r}, s{p}\ns_and_b32 s{r+1}, s{p+1}, 0xffff\ns_mov_b32 s{r+2}, {nbytes}\ns_mov_b32 s{r+3}, 0x20000")

class Stream:
    def __init__(s,g,D,AH,GR=2): s.g=g; s.n=0; s.q=[]; s.D=D; s.AH=AH; s.GR=GR; s.m={}; s.total=0
    def add(s,pre,text): s.q.append((pre,text)); s.total+=1
    def qmark(s,name): s.m[name]=s.total
    def op(s,text):
        assert not s.q
        s.g(text); s.n+=1; s.total+=1
    def pump(s,k,paced=True):
        k=min(k,len(s.q)); i=0
        while i<k:
            c=min(s.GR,k-i)
            if paced and s.n > s.D-c: s.g(f"s_waitcnt vmcnt({s.D-c})")
            for _ in range(c):
                pre,text=s.q.pop(0)
                if pre: s.g(pre)
                s.g(text); s.n+=1
            i+=c
    def need(s,name,extra="",ah=None):
        tgt=s.m[name]; ah=s.AH if ah is None else ah
        s.pump(max(0,tgt+ah-s.n))
        c=min(63,s.n-tgt); s.g(f"s_waitcnt vmcnt({c}) {extra}")

def unit_loads(st, dst, rsrd, vaddr, sbase, offs, flags, name):
    for j,off in enumerate(offs):
        hi=off & ~0xfff; lo=off & 0xfff
        if hi==0: pre=None; sreg=f"s{sbase}"
        else: pre=f"s_add_u32 s{S_T}, s{sbase}, {hi}"; sreg=f"s{S_T}"
        st.add(pre,f"buffer_load_dwordx4 v[{dst+4*j}:{dst+4*j+3}], v{vaddr}, s[{rsrd}:{rsrd+3}], {sreg} offen offset:{lo} {flags}")
    st.qmark(name)

def unit_compute(g, u, bop, first):
    def perms(t, jp):
        q=jp>>1; sel=S_SELHI if jp&1 else S_SELLO
        for i in range(4):
            g(f"v_perm_b32 v{t+i}, v{u+4*(2*i+1)+q}, v{u+4*(2*i)+q}, s{sel}")
    def mf(t, jp):
        c = "0" if first else f"v[{ACC+4*jp}:{ACC+4*jp+3}]"
        g(f"v_mfma_f32_16x16x32_bf16 v[{ACC+4*jp}:{ACC+4*jp+3}], v[{t}:{t+3}], v[{bop}:{bop+3}], {c}")
    T=[TA,TB]
    perms(T[0],0)
    for jp in range(8):
        if jp<7: perms(T[(jp+1)&1], jp+1)
        else: g("s_nop 1")
        mf(T[jp&1], jp)

def dump_acc(g, mask, swave, base, vbase=0):
    g(f"s_lshl_b32 s{S_B}, s{swave}, 12\ns_add_u32 s{S_B}, s{S_B}, {vbase}\nv_lshlrev_b32 v8, 7, v1\nv_lshl_add_u32 v8, v2, 4, v8\nv_add_u32 v8, s{S_B}, v8")
    g(f"s_mov_b64 exec, s[{mask}:{mask+1}]")
    g("s_nop 5")
    for jp in range(8):
        g(f"ds_write_b128 v8, v[{ACC+4*jp}:{ACC+4*jp+3}] offset:{base+jp*512}")
    g("s_mov_b64 exec, -1")

def rnd2(g,a,b,t):
    g(f"v_cvt_pk_bf16_f32 v{t}, v{a}, v{b}\nv_lshlrev_b32 v{a}, 16, v{t}\nv_and_b32 v{b}, 0xffff0000, v{t}")

def gen(mimic=True, nt="nt", stamps=False, D=4, AH=4, GR=2, DL=8, gpos=1, D2=0, SL1=4, SL2=2, FS=0, TP=0, SMP=0, SL3=0, LL=0, PB2=0, PB3=0, PB1=0):
    g=G()
    hdr=f"""; fused persistent decode kernel: 256 WGs x 8 streaming waves, tagged cross-WG hand-offs
; @launch grid=(256,1,1) block=(512,1,1) lds={LDS_TOTAL}
.amdgcn_target "amdgcn-amd-amdhsa--gfx950"
.text
.globl {KN}
.p2align 8
.type {KN},@function
{KN}:
"""
    stc={'n':0}
    def stamp(always=False):
        if not stamps: return
        if stamps==2 and not always: return
        assert stc['n']<11
        g(f"s_memrealtime s[14:15]\ns_waitcnt lgkmcnt(0)\ns_mov_b32 s{3+stc['n']}, s14"); stc['n']+=1
    def stamp_out(grp):
        if not stamps: return
        L=g.new("Lso")
        g(f"s_cmp_lg_u32 s{S_W4}, 0\ns_cbranch_scc1 {L}")
        g("s_mov_b64 exec, 1")
        g(f"s_lshl_b32 s{S_E}, s2, 7\ns_add_u32 s{S_E}, s{S_E}, {WS_ST+64*grp}\nv_mov_b32 v9, 0")
        for i in range(stc['n']):
            g(f"v_mov_b32 v8, s{3+i}\nbuffer_store_dword v8, v9, s[{R_WS}:{R_WS+3}], s{S_E} offen offset:{4*i}")
        g("s_mov_b64 exec, -1")
        g.label(L)
    g(f"s_cmp_ge_u32 s2, 256\ns_cbranch_scc1 L_end")
    g("s_load_dwordx16 s[16:31], s[0:1], 0\ns_load_dwordx8 s[32:39], s[0:1], 64")
    g(f"v_lshrrev_b32 v1, 6, v0\nv_and_b32 v0, 63, v0\ns_nop 0\nv_readfirstlane_b32 s{S_WAVE}, v1")
    g(f"s_mov_b32 s{S_SELLO}, 0x05040100\ns_mov_b32 s{S_SELHI}, 0x07060302")
    g(f"s_and_b32 s{S_KS}, s2, 3\ns_lshr_b32 s{S_CS}, s2, 2")
    g(f"s_nop 3\ns_and_b32 s{S_W4}, s{S_WAVE}, 3")
    g("v_lshrrev_b32 v1, 4, v0\nv_and_b32 v2, 7, v0\nv_bfe_u32 v3, v0, 3, 1\nv_and_b32 v9, 15, v0")
    g("v_lshlrev_b32 v11, 5, v3\nv_lshl_add_u32 v11, v1, 3, v11")
    g("v_lshlrev_b32 v10, 5, v0")
    g("v_lshlrev_b32 v4, 8, v9\nv_lshl_add_u32 v4, v1, 4, v4")
    g("v_lshlrev_b32 v5, 10, v1\nv_lshl_add_u32 v5, v9, 4, v5")
    g("v_lshlrev_b32 v6, 13, v11\nv_lshl_add_u32 v6, v2, 4, v6")
    g("v_mul_u32_u24 v7, 7168, v11\nv_lshl_add_u32 v7, v2, 4, v7")
    g(f"v_lshrrev_b32 v8, 1, v1\nv_cmp_eq_u32 s[{S_MN}:{S_MN+1}], v3, v8\nv_cmp_eq_u32 s[{S_MW}:{S_MW+1}], 0, v3")
    g(f"s_lshl_b32 s{S_XB}, s{S_WAVE}, 11")
    g("s_waitcnt lgkmcnt(0)")
    srd(g,R_X,P_X,16384)
    g(f"buffer_load_dwordx4 v[16:19], v10, s[{R_X}:{R_X+3}], s{S_XB} offen\nbuffer_load_dwordx4 v[20:23], v10, s[{R_X}:{R_X+3}], s{S_XB} offen offset:16")
    srd(g,R_WS,P_WS,WS_BYTES); srd(g,R_DBG,P_DBG,256); srd(g,R_OUT,P_OUT,16384)
    srd(g,R_K,P_K,33554432); srd(g,R_V,P_V,33554432)
    g(f"s_lshl_b32 s{S_KB}, s2, 17\ns_lshl_b32 s{S_B}, s{S_WAVE}, 14\ns_add_u32 s{S_KB}, s{S_KB}, s{S_B}")
    g(f"s_lshr_b32 s{S_LB}, s2, 3\ns_lshl_b32 s{S_LB}, s{S_LB}, 18\ns_and_b32 s{S_B}, s2, 7\ns_lshl_b32 s{S_B}, s{S_B}, 8\ns_add_u32 s{S_LB}, s{S_LB}, s{S_B}")
    g(f"s_lshl_b32 s{S_B}, s{S_W4}, 16\ns_add_u32 s{S_LB}, s{S_LB}, s{S_B}")
    g(f"s_cmp_ge_u32 s{S_WAVE}, 4\ns_cbranch_scc1 L_g1")

    koffs=lambda t:[t*8192+T*4096+kk*64 for T in range(2) for kk in range(4)]
    voffs=lambda t:[t*8192+j*256 for j in range(4)]+[t*8192+4096+j*256 for j in range(4)]

    def tag4(d, mask=TAGMASK):
        g(f"v_mov_b32 v15, 0x{mask:x}")
        for r in range(4): g(f"v_bfi_b32 v{d+r}, v15, s{S_TAG+r}, v{d+r}")
    def check(regs, acc, t1, t2, mask):
        g(f"v_mov_b32 v{acc}, 0")
        for q in regs:
            for r in (0,2):
                g(f"v_xor_b32 v{t1}, s{S_TAG+r}, v{q+r}\nv_xor_b32 v{t2}, s{S_TAG+r+1}, v{q+r+1}\nv_or3_b32 v{acc}, v{acc}, v{t1}, v{t2}")
        g(f"v_and_b32 v{acc}, {mask}, v{acc}\nv_cmp_ne_u32 vcc, 0, v{acc}")
    def gather_check(wait, items, regs, acc, t1, t2, mask=TAGMASK):
        Lc=g.new("Lchk"); Ld=g.new("Lok")
        g(f"s_mov_b32 s{S_SPIN}, 0")
        wait()
        g.label(Lc)
        check(regs,acc,t1,t2,mask)
        g(f"s_cbranch_vccz {Ld}")
        g(f"s_add_u32 s{S_SPIN}, s{S_SPIN}, 1\ns_cmp_ge_u32 s{S_SPIN}, {SPIN_MAX}\ns_cbranch_scc1 {Ld}")
        g("s_mov_b64 exec, vcc")
        for pre,t in items:
            if pre: g(pre)
            g(t)
        g(f"s_waitcnt vmcnt(0)\ns_mov_b64 exec, -1\ns_branch {Lc}")
        g.label(Ld)
    def masked_gather(groups, acc, t1, t2, sleep, first_wait="s_waitcnt vmcnt(0)", mid=None):
        Ll=g.new("Lmg"); Ld=g.new("Lmgd")
        for items,quads in groups:
            for pre,t in items:
                if pre: g(pre)
                g(t)
        if mid: mid()
        g(f"s_mov_b32 s{S_SPIN}, 0")
        g(first_wait)
        g.label(Ll)
        for i,(items,quads) in enumerate(groups):
            check(quads,acc,t1,t2,TAGMASK)
            g(f"s_nop 0\ns_mov_b64 s[{20+2*i}:{21+2*i}], vcc")
        g("s_or_b64 vcc, s[20:21], s[20:21]")
        for i in range(1,len(groups)): g(f"s_or_b64 vcc, vcc, s[{20+2*i}:{21+2*i}]")
        g(f"s_cbranch_scc0 {Ld}")
        g(f"s_add_u32 s{S_SPIN}, s{S_SPIN}, 1\ns_cmp_ge_u32 s{S_SPIN}, {SPIN_MAX}\ns_cbranch_scc1 {Ld}")
        if sleep: g(f"s_sleep {sleep}")
        for i,(items,quads) in enumerate(groups):
            Ls=g.new("Lmgs")
            g(f"s_mov_b64 exec, s[{20+2*i}:{21+2*i}]\ns_cbranch_execz {Ls}")
            for pre,t in items:
                if pre: g(pre)
                g(t)
            g.label(Ls)
        g(f"s_mov_b64 exec, -1\ns_waitcnt vmcnt(0)\ns_branch {Ll}")
        g.label(Ld)
    def sum4(a):
        g(f"v_add_f32 v{a}, v{a}, v{a+4}\nv_add_f32 v{a+8}, v{a+8}, v{a+12}\nv_add_f32 v{a}, v{a}, v{a+8}")
    def write4(a, va, base):
        g(f"v_cvt_pk_bf16_f32 v8, v{a}, v{a+1}\nv_cvt_pk_bf16_f32 v9, v{a+2}, v{a+3}")
        g(f"ds_write_b16 v{va}, v8 offset:{base}\nds_write_b16_d16_hi v{va}, v8 offset:{base+16}\nds_write_b16 v{va}, v9 offset:{base+32}\nds_write_b16_d16_hi v{va}, v9 offset:{base+48}")

    def program(grp):
        st=Stream(g,D,AH,GR); stc['n']=0
        st.n=2; st.total=2; st.m["x"]=2
        stamp(True)
        if grp==0:
            srd(g,R_A,P_WQ,8388608); srd(g,R_B,P_G,7340032); srd(g,R_L,P_D,7340032)
            g(f"s_cmp_ge_u32 s2, 224\ns_cselect_b32 s{R_B+2}, 0, s{R_B+2}\ns_cselect_b32 s{R_L+2}, 0, s{R_L+2}")
        else:
            srd(g,R_A,P_U,7340032); srd(g,R_L,P_WO,8388608)
            g(f"s_cmp_ge_u32 s2, 224\ns_cselect_b32 s{R_A+2}, 0, s{R_A+2}")
            Ln=g.new("Lnoat")
            g(f"s_cmp_lg_u32 s{S_WAVE}, 7\ns_cbranch_scc1 {Ln}\ns_cmp_lg_u32 s2, 0\ns_cbranch_scc1 {Ln}")
            g(f"s_memrealtime s[{S_TAG}:{S_TAG+1}]\ns_waitcnt lgkmcnt(0)\ns_or_b32 s{S_TAG+1}, s{S_TAG+1}, 0x80000000\nv_mov_b32 v28, s{S_TAG}\nv_mov_b32 v29, s{S_TAG+1}\nv_mov_b32 v12, 0\ns_mov_b64 exec, 1")
            g(f"buffer_store_dwordx2 v[28:29], v12, s[{R_DBG}:{R_DBG+3}], 0 offen sc0 sc1\ns_mov_b64 exec, -1")
            g.label(Ln)
        g(f"s_lshl_b32 s{S_A}, s{S_KS}, 8\ns_lshl_b32 s{S_B}, s{S_W4}, 6\ns_add_u32 s{S_A}, s{S_A}, s{S_B}")
        g(f"s_lshl_b32 s{S_C}, s{S_CS}, 7")
        g(f"s_lshl_b32 s{S_AB}, s{S_A}, 13\ns_add_u32 s{S_AB}, s{S_AB}, s{S_C}")
        rot = 2 if grp==0 else 5
        g(f"s_add_u32 s{S_C}, s{S_CS}, {rot}\ns_and_b32 s{S_C}, s{S_C}, 7\ns_and_b32 s{S_D}, s{S_CS}, 0xf8\ns_or_b32 s{S_C}, s{S_C}, s{S_D}\ns_lshl_b32 s{S_C}, s{S_C}, 7")
        g(f"s_mul_i32 s{S_BB}, s{S_A}, 7168\ns_add_u32 s{S_BB}, s{S_BB}, s{S_C}")
        if grp==0:
            g(f"s_lshr_b32 s{S_GB}, s2, 5\ns_lshl_b32 s{S_GB}, s{S_GB}, 14\ns_lshr_b32 s{S_F}, s2, 3\ns_and_b32 s{S_F}, s{S_F}, 3\ns_lshl_b32 s{S_F}, s{S_F}, 12\ns_add_u32 s{S_GB}, s{S_GB}, s{S_F}")
            gitems=[(f"s_add_u32 s{S_T}, s{S_GB}, {WS_QP+ks*131072}", f"buffer_load_dwordx4 v[{UA+4*ks}:{UA+3+4*ks}], v6, s[{R_WS}:{R_WS+3}], s{S_T} offen sc1") for ks in range(4)]
            gregs=[UA+4*i for i in range(4)]
        else:
            g(f"s_lshr_b32 s{S_GB}, s2, 3\ns_lshl_b32 s{S_GB}, s{S_GB}, 9")
            gitems=[(f"s_add_u32 s{S_T}, s{S_GB}, {base+ks*131072}", f"buffer_load_dwordx4 v[{UB+16*m+4*ks}:{UB+3+16*m+4*ks}], v6, s[{R_WS}:{R_WS+3}], s{S_T} offen sc1") for m,base in enumerate((WS_GP,WS_UP)) for ks in range(4)]
            gregs=[UB+4*i for i in range(8)]
        def addg():
            for it in gitems: st.add(*it)
            st.qmark("g1")
        if grp==0:
            unit_loads(st,UA,R_A,6,S_AB,[j*8192 for j in range(8)],nt,"A")
            unit_loads(st,UB,R_B,7,S_BB,[j*7168 for j in range(8)],nt,"B")
        else:
            unit_loads(st,UA,R_A,7,S_BB,[j*7168 for j in range(8)],nt,"A")
        unit_loads(st,KU[0],R_K,4,S_KB,koffs(0),nt,"K0")
        unit_loads(st,KU[1],R_K,4,S_KB,koffs(1),nt,"K1")
        if gpos==0: addg()
        unit_loads(st,VU[0],R_V,5,S_KB,voffs(0),nt,"V0")
        if gpos==1: addg()
        unit_loads(st,VU[1],R_V,5,S_KB,voffs(1),nt,"V1")
        if not LL: unit_loads(st,UA,R_L,7,S_LB,[j*2048 for j in range(8)],nt,"L")
        st.m["E"]=max(st.m["A"], 2+AH+PB1+1)
        st.pump(AH,paced=False)
        g(f"s_waitcnt vmcnt({AH})")
        for i in range(8):
            g(f"v_lshlrev_b32 v{32+2*i}, 16, v{16+i}\nv_and_b32 v{33+2*i}, 0xffff0000, v{16+i}")
        def red64(r,t):
            for m in ("quad_perm:[1,0,3,2]","quad_perm:[2,3,0,1]","row_half_mirror","row_mirror"):
                g(f"s_nop 1\nv_add_f32_dpp v{r}, v{r}, v{r} {m} row_mask:0xf bank_mask:0xf")
            g(f"v_mov_b32 v{t}, v{r}\ns_nop 1\nv_permlane16_swap_b32 v{r}, v{t}\ns_nop 1\nv_add_f32 v{r}, v{r}, v{t}")
            g(f"v_mov_b32 v{t}, v{r}\ns_nop 1\nv_permlane32_swap_b32 v{r}, v{t}\ns_nop 1\nv_add_f32 v{r}, v{r}, v{t}")
        g("v_add_f32 v8, v32, v33")
        for i in range(2,16): g(f"v_add_f32 v8, v8, v{32+i}")
        red64(8,9)
        g("v_mul_f32 v8, 0x3a800000, v8\nv_mov_b32 v13, 0")
        for i in range(16):
            g(f"v_sub_f32 v9, v{32+i}, v8\nv_fmac_f32 v13, v9, v9")
        red64(13,9)
        g("v_mul_f32 v13, 0x3a800000, v13")
        g("v_cvt_pk_bf16_f32 v12, v8, v13\nv_lshlrev_b32 v8, 16, v12\nv_and_b32 v13, 0xffff0000, v12")
        g("v_add_f32 v13, 0x3727c5ac, v13\nv_cvt_pk_bf16_f32 v13, v13, v13\nv_and_b32 v13, 0xffff0000, v13")
        g("v_sqrt_f32 v13, v13\ns_nop 0\nv_cvt_pk_bf16_f32 v13, v13, v13\nv_and_b32 v13, 0xffff0000, v13")
        g("v_rcp_f32 v12, v13\ns_nop 0\nv_fma_f32 v9, -v13, v12, 1.0\nv_fma_f32 v12, v9, v12, v12")
        for i in range(8):
            a=32+2*i
            g(f"v_sub_f32 v{a}, v{a}, v8\nv_sub_f32 v{a+1}, v{a+1}, v8\nv_cvt_pk_bf16_f32 v9, v{a}, v{a+1}")
            g(f"v_lshlrev_b32 v{a}, 16, v9\nv_and_b32 v{a+1}, 0xffff0000, v9")
            g(f"v_mul_f32 v{a}, v{a}, v12\nv_mul_f32 v{a+1}, v{a+1}, v12\nv_cvt_pk_bf16_f32 v{16+i}, v{a}, v{a+1}")
        g(f"v_cmp_eq_u32 vcc, s{S_KS}, v1\nv_and_b32 v9, 15, v0\nv_lshlrev_b32 v9, 5, v9\ns_lshl_b32 s{S_B}, s{S_WAVE}, 9\nv_add_u32 v9, s{S_B}, v9\ns_mov_b64 exec, vcc")
        g(f"ds_write_b128 v9, v[16:19] offset:{LDS_XN}\nds_write_b128 v9, v[20:23] offset:{LDS_XN+16}\ns_mov_b64 exec, -1")
        g(f"v_lshlrev_b32 v8, 9, v2\nv_lshl_add_u32 v8, v11, 1, v8\ns_lshl_b32 s{S_B}, s{S_W4}, 7\nv_add_u32 v8, s{S_B}, v8")
        if PB1: st.pump(PB1,paced=False)
        stamp()
        g("s_waitcnt lgkmcnt(0)\ns_barrier")
        g(f"ds_read_b128 v[{BOP}:{BOP+3}], v8 offset:{LDS_XN}")
        if grp==1:
            Ln=g.new("Lnopl")
            g(f"v_mov_b32 v24, 0\ns_cmp_lg_u32 s{S_WAVE}, 7\ns_cbranch_scc1 {Ln}")
            g(f"buffer_load_dwordx2 v[28:29], v24, s[{R_DBG}:{R_DBG+3}], 0 offen sc0 sc1")
            g.label(Ln)
        st.need("E","lgkmcnt(0)")
        unit_compute(g,UA,BOP,True)
        dump_acc(g,S_MN,S_W4,LDS_DUMP+(0 if grp==0 else 32768))
        if grp==0:
            st.need("B")
            unit_compute(g,UB,BOP,True)
            dump_acc(g,S_MN,S_W4,LDS_DUMP+16384)
        else:
            Ln=g.new("Lnoep")
            g(f"s_cmp_lg_u32 s{S_WAVE}, 7\ns_cbranch_scc1 {Ln}")
            Lc=g.new("Lep"); Ld=g.new("Lepd")
            g(f"s_mov_b32 s{S_SPIN}, 0")
            g.label(Lc)
            g(f"v_readfirstlane_b32 s{S_B}, v29\ns_nop 3\ns_cmp_lt_i32 s{S_B}, 0\ns_cbranch_scc1 {Ld}")
            g(f"s_add_u32 s{S_SPIN}, s{S_SPIN}, 1\ns_cmp_ge_u32 s{S_SPIN}, {SPIN_MAX}\ns_cbranch_scc1 {Ld}")
            g(f"buffer_load_dwordx2 v[28:29], v24, s[{R_DBG}:{R_DBG+3}], 0 offen sc0 sc1\ns_waitcnt vmcnt(0)\ns_branch {Lc}")
            g.label(Ld)
            g(f"v_mov_b32 v8, {LDS_EP}\ns_mov_b64 exec, 1\nds_write_b64 v8, v[28:29]\ns_mov_b64 exec, -1")
            g.label(Ln)
            st.need("K0")
        g(f"s_lshl_b32 s{S_B}, s{S_W4}, 6\nv_add_u32 v12, s{S_B}, v0")
        if grp==0: g("v_lshlrev_b32 v6, 4, v12")
        else: g("v_lshrrev_b32 v6, 5, v12\nv_lshlrev_b32 v6, 14, v6\nv_and_b32 v9, 31, v12\nv_lshl_add_u32 v6, v9, 4, v6")
        g("v_and_b32 v9, 15, v0\nv_lshlrev_b32 v7, 14, v1\nv_lshl_add_u32 v7, v9, 4, v7")
        if PB2: st.pump(PB2,paced=False)
        stamp()
        g("s_waitcnt lgkmcnt(0)\ns_barrier")
        g(f"v_mov_b32 v8, {LDS_EP}\nds_read_b64 v[28:29], v8\ns_waitcnt lgkmcnt(0)\nv_readfirstlane_b32 s{S_A}, v28\nv_readfirstlane_b32 s{S_B}, v29\ns_nop 3")
        g(f"s_and_b32 s{S_TAG}, s{S_A}, {TAGMASK}\ns_bfe_u32 s{S_TAG+1}, s{S_A}, 0xa000a\ns_bfe_u32 s{S_TAG+2}, s{S_A}, 0xa0014")
        g(f"s_lshr_b32 s{S_TAG+3}, s{S_A}, 30\ns_and_b32 s{S_B}, s{S_B}, 0xff\ns_lshl_b32 s{S_B}, s{S_B}, 2\ns_or_b32 s{S_TAG+3}, s{S_TAG+3}, s{S_B}")
        def publish_p1(lo, hi, only224):
            Lsk=g.new("Lsk")
            if only224: g(f"s_cmp_ge_u32 s2, 224\ns_cbranch_scc1 {Lsk}")
            g(f"s_cmp_lt_u32 s{S_WAVE}, {lo}\ns_cbranch_scc1 {Lsk}\ns_cmp_ge_u32 s{S_WAVE}, {hi}\ns_cbranch_scc1 {Lsk}")
            g(f"s_lshr_b32 s{S_A}, s{S_WAVE}, 1\ns_and_b32 s{S_B}, s{S_WAVE}, 1\ns_lshl_b32 s{S_C}, s{S_A}, 14\ns_lshl_b32 s{S_D}, s{S_B}, 9\ns_add_u32 s{S_C}, s{S_C}, s{S_D}")
            g(f"v_lshlrev_b32 v8, 10, v1\nv_lshl_add_u32 v8, v3, 7, v8\nv_lshl_add_u32 v8, v2, 4, v8\nv_add_u32 v8, s{S_C}, v8")
            n=0
            for wv in range(4):
                for e in range(2):
                    g(f"ds_read_b128 v[{32+4*n}:{35+4*n}], v8 offset:{LDS_DUMP+wv*4096+e*256}"); n+=1
            g(f"s_cmp_eq_u32 s{S_A}, 1\ns_cselect_b32 s{S_E}, 2, 0\ns_cmp_eq_u32 s{S_A}, 2\ns_cselect_b32 s{S_E}, 5, s{S_E}\ns_add_u32 s{S_E}, s{S_E}, s{S_CS}\ns_and_b32 s{S_E}, s{S_E}, 7\ns_and_b32 s{S_F}, s{S_CS}, 0xf8\ns_or_b32 s{S_E}, s{S_E}, s{S_F}")
            g(f"s_lshl_b32 s{S_C}, s{S_A}, 19\ns_lshl_b32 s{S_D}, s{S_KS}, 17\ns_add_u32 s{S_C}, s{S_C}, s{S_D}\ns_lshl_b32 s{S_D}, s{S_E}, 8\ns_add_u32 s{S_C}, s{S_C}, s{S_D}\ns_lshl_b32 s{S_D}, s{S_B}, 4\ns_add_u32 s{S_C}, s{S_C}, s{S_D}")
            g("v_lshlrev_b32 v9, 14, v2\nv_lshl_add_u32 v9, v3, 7, v9\nv_lshl_add_u32 v9, v1, 5, v9")
            g("s_waitcnt lgkmcnt(0)")
            for r in range(4):
                g(f"v_add_f32 v{24+r}, v{32+r}, v{36+r}")
                for n in range(2,8): g(f"v_add_f32 v{24+r}, v{24+r}, v{32+4*n+r}")
            tag4(24,0xff)
            g(f"buffer_store_dwordx4 v[24:27], v9, s[{R_WS}:{R_WS+3}], s{S_C} offen sc1")
            g.label(Lsk)
        if grp==0:
            publish_p1(0,2,False); publish_p1(2,4,True)
        else: publish_p1(4,6,True)
        stamp()
        def lds_qh_addr():
            g(f"s_lshl_b32 s{S_B}, s{S_W4}, 6\nv_add_u32 v12, s{S_B}, v0")
            g("v_lshrrev_b32 v14, 4, v12\nv_lshlrev_b32 v14, 7, v14\nv_lshl_add_u32 v14, v3, 6, v14\nv_lshl_add_u32 v14, v2, 1, v14")
        if grp==0:
            gather_check(lambda: st.need("g1"), gitems, gregs, 8, 9, 10, 0xff)
            lds_qh_addr()
            for r in range(4): sum4(UA+r)
            write4(UA,14,LDS_QS)
        else:
            Lskh=g.new("Lskh")
            st.pump(st.m["g1"]+AH-st.n)
            g(f"s_cmp_ge_u32 s2, 224\ns_cbranch_scc1 {Lskh}")
            gather_check(lambda: st.need("g1"), gitems, gregs, 8, 9, 10, 0xff)
            lds_qh_addr()
            H=UB
            for m in range(2):
                for r in range(4): sum4(H+16*m+r)
            rnd2(g,H,H+1,8); rnd2(g,H+2,H+3,8); rnd2(g,H+16,H+17,8); rnd2(g,H+18,H+19,8)
            for r in range(4):
                g(f"v_mul_f32 v{H+r}, 0xbfb8aa3b, v{H+r}\nv_exp_f32 v{H+r}, v{H+r}\ns_nop 0\nv_add_f32 v{H+r}, 1.0, v{H+r}\nv_rcp_f32 v{H+r}, v{H+r}\ns_nop 0")
            rnd2(g,H,H+1,8); rnd2(g,H+2,H+3,8)
            for r in range(4): g(f"v_mul_f32 v{H+r}, v{H+r}, v{H+16+r}")
            write4(H,14,LDS_HS)
            g.label(Lskh)
        if PB3: st.pump(PB3,paced=False)
        stamp()
        g("s_waitcnt lgkmcnt(0)\ns_barrier")
        g("v_lshlrev_b32 v8, 8, v2\nv_lshl_add_u32 v8, v1, 4, v8")
        for kk in range(4):
            g(f"ds_read_b128 v[{BOP+4*kk}:{BOP+4*kk+3}], v8 offset:{LDS_QS+kk*64}")
        st.pump(2)
        c=min(63,st.n-st.m["K1"]); g(f"s_waitcnt vmcnt({c}) lgkmcnt(0)")
        for t in range(2):
            u=KU[t]
            for kk in range(4):
                for T in range(2):
                    a=ACC+4*(2*t+T)
                    c="0" if kk==0 else f"v[{a}:{a+3}]"
                    g(f"v_mfma_f32_16x16x32_bf16 v[{a}:{a+3}], v[{u+16*T+4*kk}:{u+16*T+4*kk+3}], v[{BOP+4*kk}:{BOP+4*kk+3}], {c}")
        st.pump(2)
        g("s_nop 7")
        NS=16
        if mimic:
            g(f"s_mov_b32 s{S_A}, 0x3db504f3")
            for i in range(0,NS,2):
                a=ACC+i
                rnd2(g,a,a+1,8)
                g(f"v_mul_f32 v{a}, s{S_A}, v{a}\nv_mul_f32 v{a+1}, s{S_A}, v{a+1}")
                rnd2(g,a,a+1,8)
            g(f"s_mov_b32 s{S_C2}, 0x3fb8aa3b")
        else:
            g(f"s_mov_b32 s{S_C2}, 0x3e0293ee")
        g(f"v_max3_f32 v8, v{ACC}, v{ACC+1}, v{ACC+2}")
        for i in range(3,NS-1,2): g(f"v_max3_f32 v8, v8, v{ACC+i}, v{ACC+i+1}")
        g(f"v_max_f32 v8, v8, v{ACC+NS-1}")
        g("v_mov_b32 v9, v8\ns_nop 1\nv_permlane16_swap_b32 v8, v9\ns_nop 1\nv_max_f32 v8, v8, v9\nv_mov_b32 v9, v8\ns_nop 1\nv_permlane32_swap_b32 v8, v9\ns_nop 1\nv_max_f32 v8, v8, v9")
        g(f"v_mul_f32 v8, s{S_C2}, v8")
        for i in range(NS): g(f"v_fma_f32 v{ACC+i}, v{ACC+i}, s{S_C2}, -v8")
        for i in range(NS): g(f"v_exp_f32 v{ACC+i}, v{ACC+i}")
        g("s_nop 0")
        for i in range(NS//2): g(f"v_cvt_pk_bf16_f32 v{BOP+i}, v{ACC+2*i}, v{ACC+2*i+1}")
        g("v_mov_b32 v9, 0")
        for i in range(NS//2):
            g(f"v_lshlrev_b32 v10, 16, v{BOP+i}\nv_and_b32 v11, 0xffff0000, v{BOP+i}\nv_add_f32 v9, v9, v10\nv_add_f32 v9, v9, v11")
        g("v_mov_b32 v10, v9\ns_nop 1\nv_permlane16_swap_b32 v9, v10\ns_nop 1\nv_add_f32 v9, v9, v10\nv_mov_b32 v10, v9\ns_nop 1\nv_permlane32_swap_b32 v9, v10\ns_nop 1\nv_add_f32 v9, v9, v10")
        g(f"v_lshlrev_b32 v10, 3, v0\ns_lshl_b32 s{S_B}, s{S_WAVE}, 6\nv_add_u32 v10, s{S_B}, v10\ns_mov_b64 exec, 0xff")
        g(f"ds_write_b64 v10, v[8:9] offset:{LDS_MLD}\ns_mov_b64 exec, -1\ns_nop 1")
        stamp()
        st.need("V0"); unit_compute(g,VU[0],BOP,True)
        st.D=DL
        st.need("V1",ah=16)
        if LL==2:
            unit_loads(st,UA,R_L,7,S_LB,[j*2048 for j in range(8)],nt,"L")
            st.pump(8,paced=False)
        unit_compute(g,VU[1],BOP+4,False)
        assert not st.q
        dump_acc(g,S_MW,S_WAVE,0,LDS_ADUMP)
        stamp()
        g("s_waitcnt lgkmcnt(0)\ns_barrier")
        g(f"s_lshl_b32 s{S_B}, s{S_WAVE}, 3\nv_mov_b32 v8, s{S_B}")
        for wv in range(8): g(f"ds_read_b64 v[{16+2*wv}:{17+2*wv}], v8 offset:{LDS_MLD+64*wv}")
        g(f"v_lshrrev_b32 v9, 5, v0\nv_bfe_u32 v10, v0, 3, 2\nv_lshlrev_b32 v11, 14, v9\nv_lshl_add_u32 v11, v2, 9, v11\nv_lshl_add_u32 v11, v10, 7, v11\ns_lshl_b32 s{S_B}, s{S_WAVE}, 4\ns_add_u32 s{S_B}, s{S_B}, {LDS_ADUMP}\nv_add_u32 v11, s{S_B}, v11")
        for n in range(4): g(f"ds_read_b128 v[{32+4*n}:{35+4*n}], v11 offset:{4096*n}")
        g(f"v_mov_b32 v15, 0x{TAGMASK:x}")
        g("s_waitcnt lgkmcnt(4)")
        g("v_max3_f32 v48, v16, v18, v20\nv_max3_f32 v48, v48, v22, v24\nv_max3_f32 v48, v48, v26, v28\nv_max_f32 v48, v48, v30")
        g(f"v_bfi_b32 v48, v15, s{S_TAG}, v48")
        for wv in range(8): g(f"v_sub_f32 v{52+wv}, v{16+2*wv}, v48\nv_exp_f32 v{52+wv}, v{52+wv}")
        g("s_nop 0\nv_mul_f32 v49, v52, v17")
        for wv in range(1,8): g(f"v_fmac_f32 v49, v{52+wv}, v{17+2*wv}")
        g("v_cmp_lt_u32 vcc, 31, v0\ns_nop 1")
        for n in range(4): g(f"v_cndmask_b32 v{52+n}, v{52+n}, v{56+n}, vcc")
        g("s_waitcnt lgkmcnt(0)")
        for r in range(4):
            g(f"v_mul_f32 v{24+r}, v52, v{32+r}")
            for n in range(1,4): g(f"v_fmac_f32 v{24+r}, v{52+n}, v{32+4*n+r}")
        for r in range(4): g(f"v_mov_b32 v{28+r}, v{24+r}")
        g("s_nop 1")
        for r in range(4): g(f"v_permlane32_swap_b32 v{24+r}, v{28+r}")
        g("s_nop 1")
        for r in range(4): g(f"v_add_f32 v{24+r}, v{24+r}, v{28+r}")
        g("v_cndmask_b32 v24, v24, v48, vcc\nv_cndmask_b32 v25, v25, v49, vcc\nv_cndmask_b32 v26, v26, v48, vcc\nv_cndmask_b32 v27, v27, v49, vcc")
        g("v_lshlrev_b32 v9, 4, v0\nv_min_u32 v9, 512, v9")
        tag4(24)
        g(f"s_lshr_b32 s{S_A}, s2, 3\ns_lshl_b32 s{S_A}, s{S_A}, 3\ns_add_u32 s{S_A}, s{S_A}, s{S_WAVE}\ns_lshl_b32 s{S_A}, s{S_A}, 3\ns_and_b32 s{S_B}, s2, 7\ns_add_u32 s{S_A}, s{S_A}, s{S_B}\ns_mul_i32 s{S_A}, s{S_A}, {APS}\ns_add_u32 s{S_A}, s{S_A}, {WS_AP}")
        g("s_mov_b32 exec_hi, 1")
        st.op(f"buffer_store_dwordx4 v[24:27], v9, s[{R_WS}:{R_WS+3}], s{S_A} offen sc1")
        g("s_mov_b64 exec, -1")
        if LL==1:
            unit_loads(st,UA,R_L,7,S_LB,[j*2048 for j in range(8)],nt,"L")
            st.pump(8,paced=False)
        g(f"v_lshlrev_b32 v6, 8, v2\nv_lshl_add_u32 v6, v1, 4, v6\ns_lshl_b32 s{S_B}, s{S_W4}, 6\nv_add_u32 v6, s{S_B}, v6")
        stamp()
        def pub_quarter(region_base, wsbase):
            g(f"v_lshrrev_b32 v9, 3, v0\nv_lshlrev_b32 v10, 9, v9\nv_lshl_add_u32 v10, v2, 4, v10\ns_lshl_b32 s{S_B}, s{S_W4}, 7\nv_add_u32 v10, s{S_B}, v10")
            for n in range(4): g(f"ds_read_b128 v[{32+4*n}:{35+4*n}], v10 offset:{region_base+4096*n}")
            g(f"v_lshlrev_b32 v11, 12, v2\nv_lshl_add_u32 v11, v9, 4, v11")
            g(f"s_lshr_b32 s{S_E}, s2, 3\ns_lshl_b32 s{S_E}, s{S_E}, 15\ns_and_b32 s{S_F}, s2, 7\ns_lshl_b32 s{S_F}, s{S_F}, 9\ns_add_u32 s{S_E}, s{S_E}, s{S_F}\ns_add_u32 s{S_E}, s{S_E}, s{S_B}\ns_add_u32 s{S_E}, s{S_E}, {wsbase}")
            g("s_waitcnt lgkmcnt(0)")
            for r in range(4): g(f"v_add_f32 v{24+r}, v{32+r}, v{36+r}\nv_add_f32 v{28+r}, v{40+r}, v{44+r}\nv_add_f32 v{24+r}, v{24+r}, v{28+r}")
            tag4(24)
            g(f"buffer_store_dwordx4 v[24:27], v11, s[{R_WS}:{R_WS+3}], s{S_E} offen sc1")
        if grp==0:
            g(f"ds_read_b128 v[{BOP}:{BOP+3}], v6 offset:{LDS_HS}")
            st.need("L","lgkmcnt(0)")
            unit_compute(g,UA,BOP,True)
            dump_acc(g,S_MW,S_W4,LDS_DUMP+32768)
            g("s_waitcnt lgkmcnt(0)\ns_barrier")
            Ls=g.new("Lsd")
            g(f"s_cmp_ge_u32 s2, 224\ns_cbranch_scc1 {Ls}")
            pub_quarter(LDS_DUMP+32768, WS_DP)
            g.label(Ls)
            g(f"s_cmp_lg_u32 s{S_WAVE}, 0\ns_cbranch_scc1 L_b6only")
            g(f"s_lshr_b32 s{S_A}, s2, 5\ns_lshl_b32 s{S_A}, s{S_A}, 11\ns_and_b32 s{S_B}, s2, 7\ns_lshl_b32 s{S_B}, s{S_B}, 8\ns_add_u32 s{S_A}, s{S_A}, s{S_B}\ns_lshr_b32 s{S_B}, s2, 3\ns_and_b32 s{S_B}, s{S_B}, 3\ns_lshl_b32 s{S_B}, s{S_B}, 6\ns_add_u32 s{S_KB}, s{S_A}, s{S_B}")
            g("v_lshlrev_b32 v11, 1, v2")
            for r in range(4): g(f"buffer_load_ushort v{60+r}, v11, s[{R_X}:{R_X+3}], s{S_KB} offen offset:{16*r}")
            g(f"v_lshrrev_b32 v5, 3, v0\nv_lshlrev_b32 v6, 17, v5\nv_lshl_add_u32 v6, v2, 4, v6\ns_lshl_b32 s{S_E}, s{S_KB}, 1")
            g("v_cmp_gt_u32 vcc, 7, v5\nv_subrev_u32 v7, 0x20000, v6\ns_nop 1\nv_cndmask_b32 v7, v7, v6, vcc\nv_cndmask_b32 v13, 0, 1.0, vcc")
            stamp()
            g("s_barrier")
            fitems=[(f"s_add_u32 s{S_F}, s{S_E}, {WS_SP+i*32768}", f"buffer_load_dwordx4 v[{16+4*i}:{19+4*i}], v6, s[{R_WS}:{R_WS+3}], s{S_F} offen sc1") for i in range(4)]
            fitems+=[(f"s_add_u32 s{S_F}, s{S_E}, {WS_DP+i*32768}", f"buffer_load_dwordx4 v[{32+4*i}:{35+4*i}], v7, s[{R_WS}:{R_WS+3}], s{S_F} offen sc1") for i in range(4)]
            if FS: g(f"s_sleep {FS}")
            if SMP:
                masked_gather([([fitems[i]],[16+4*i]) for i in range(SMP)],8,9,10,SL2)
                masked_gather([([fitems[i]],[16+4*i]) for i in range(SMP,8)],8,9,10,0)
            else:
                masked_gather([([fitems[i]],[16+4*i]) for i in range(8)],8,9,10,SL2)
            stamp()
            for r in range(16): g(f"v_mul_f32 v{32+r}, v{32+r}, v13")
            for m in range(2):
                for r in range(4): sum4(16+16*m+r)
            regs=[16,17,18,19,32,33,34,35]
            g("s_nop 1")
            for r in regs: g(f"v_add_f32_dpp v{r}, v{r}, v{r} row_ror:8 row_mask:0xf bank_mask:0xf")
            for r in regs: g(f"v_mov_b32 v{r+4}, v{r}")
            g("s_nop 1")
            for r in regs: g(f"v_permlane16_swap_b32 v{r}, v{r+4}")
            g("s_nop 1")
            for r in regs: g(f"v_add_f32 v{r}, v{r}, v{r+4}")
            for r in regs: g(f"v_mov_b32 v{r+4}, v{r}")
            g("s_nop 1")
            for r in regs: g(f"v_permlane32_swap_b32 v{r}, v{r+4}")
            g("s_nop 1")
            for r in regs: g(f"v_add_f32 v{r}, v{r}, v{r+4}")
            rnd2(g,16,17,5); rnd2(g,18,19,5); rnd2(g,32,33,5); rnd2(g,34,35,5)
            for r in range(4):
                g(f"v_mul_f32 v{20+r}, 0xbfb8aa3b, v{32+r}\nv_exp_f32 v{20+r}, v{20+r}\ns_nop 0\nv_add_f32 v{20+r}, 1.0, v{20+r}\nv_rcp_f32 v{20+r}, v{20+r}\ns_nop 0\nv_mul_f32 v{32+r}, v{32+r}, v{20+r}")
            rnd2(g,32,33,5); rnd2(g,34,35,5)
            for r in range(4): g(f"v_mul_f32 v{16+r}, v{16+r}, v{32+r}")
            rnd2(g,16,17,5); rnd2(g,18,19,5)
            for r in range(4): g(f"v_lshlrev_b32 v{60+r}, 16, v{60+r}\nv_add_f32 v{16+r}, v{16+r}, v{60+r}")
            g("v_cvt_pk_bf16_f32 v20, v16, v17\nv_cvt_pk_bf16_f32 v21, v18, v19")
            g("s_mov_b64 exec, 0xff")
            g(f"buffer_store_short v20, v11, s[{R_OUT}:{R_OUT+3}], s{S_KB} offen\nbuffer_store_short_d16_hi v20, v11, s[{R_OUT}:{R_OUT+3}], s{S_KB} offen offset:16")
            g(f"buffer_store_short v21, v11, s[{R_OUT}:{R_OUT+3}], s{S_KB} offen offset:32\nbuffer_store_short_d16_hi v21, v11, s[{R_OUT}:{R_OUT+3}], s{S_KB} offen offset:48")
            g("s_mov_b64 exec, -1")
            stamp(True)
            stamp_out(0)
            g("s_endpgm")
        else:
            g(f"s_lshl_b32 s{S_B}, s{S_W4}, 6\nv_add_u32 v12, s{S_B}, v0")
            g(f"v_lshrrev_b32 v9, 5, v12\nv_and_b32 v10, 31, v12\ns_mov_b32 s{S_A}, {32*8*APS}\nv_mul_lo_u32 v13, v9, s{S_A}\nv_add_u32 v14, 512, v13\nv_lshl_add_u32 v13, v10, 4, v13")
            g(f"s_lshr_b32 s{S_E}, s2, 3\ns_mul_i32 s{S_E}, s{S_E}, {8*APS}\ns_add_u32 s{S_E}, s{S_E}, {WS_AP}")
            oitems=[(None,f"buffer_load_dwordx4 v[{96+4*sp}:{99+4*sp}], v14, s[{R_WS}:{R_WS+3}], s{S_E} offen offset:{APS*sp} sc1") for sp in range(8)]
            oitems+=[(None,f"buffer_load_dwordx4 v[{32+4*sp}:{35+4*sp}], v13, s[{R_WS}:{R_WS+3}], s{S_E} offen offset:{APS*sp} sc1") for sp in range(8)]
            mid=lambda: g("v_bfe_u32 v10, v0, 3, 2\nv_lshlrev_b32 v11, 8, v9\nv_lshl_add_u32 v11, v10, 6, v11\nv_lshl_add_u32 v11, v2, 1, v11")
            if TP==1:
                masked_gather([([oitems[sp]],[96+4*sp]) for sp in range(8)],8,12,15,SL1,mid=mid)
                masked_gather([([oitems[8+sp]],[32+4*sp]) for sp in range(8)],8,12,15,0)
            elif TP>=2:
                smp={2:[5],3:[3,5],4:[1,3,5,7]}[TP]
                masked_gather([([oitems[sp]],[96+4*sp]) for sp in smp],8,12,15,SL1,mid=mid)
                def pretrans():
                    for jp in range(8):
                        q=jp>>1; sel=S_SELHI if jp&1 else S_SELLO
                        for i in range(4):
                            g(f"v_perm_b32 v{192+4*jp+i}, v{UA+4*(2*i+1)+q}, v{UA+4*(2*i)+q}, s{sel}")
                masked_gather([(([oitems[8+sp]],[32+4*sp]) if sp in smp else ([oitems[sp],oitems[8+sp]],[96+4*sp,32+4*sp])) for sp in range(8)],8,12,15,SL3,mid=pretrans)
            else:
                masked_gather([([oitems[sp],oitems[8+sp]],[96+4*sp,32+4*sp]) for sp in range(8)],8,9,10,SL1,mid=mid)
            stamp()
            g("v_max3_f32 v16, v96, v100, v104\nv_max3_f32 v16, v16, v108, v112\nv_max3_f32 v16, v16, v116, v120\nv_max_f32 v16, v16, v124")
            for sp in range(8): g(f"v_sub_f32 v{24+sp}, v{96+4*sp}, v16\nv_exp_f32 v{24+sp}, v{24+sp}")
            g("s_nop 0\nv_mul_f32 v17, v24, v97")
            for sp in range(1,8): g(f"v_fmac_f32 v17, v{24+sp}, v{97+4*sp}")
            g("v_rcp_f32 v18, v17\ns_nop 0\nv_fma_f32 v19, -v17, v18, 1.0\nv_fma_f32 v18, v19, v18, v18")
            for r in range(4):
                g(f"v_mul_f32 v{20+r}, v24, v{32+r}")
                for sp in range(1,8): g(f"v_fmac_f32 v{20+r}, v{24+sp}, v{32+4*sp+r}")
                g(f"v_mul_f32 v{20+r}, v{20+r}, v18")
            write4(20,11,LDS_OS)
            g("s_waitcnt lgkmcnt(0)\ns_barrier")
            g(f"ds_read_b128 v[{BOP}:{BOP+3}], v6 offset:{LDS_OS}")
            g("s_waitcnt vmcnt(0) lgkmcnt(0)")
            if TP>=2:
                for jp in range(8):
                    g(f"v_mfma_f32_16x16x32_bf16 v[{ACC+4*jp}:{ACC+4*jp+3}], v[{192+4*jp}:{195+4*jp}], v[{BOP}:{BOP+3}], 0")
            else:
                unit_compute(g,UA,BOP,True)
            dump_acc(g,S_MW,S_W4,LDS_DUMP)
            g("s_waitcnt lgkmcnt(0)\ns_barrier")
            pub_quarter(LDS_DUMP, WS_SP)
            stamp(True)
            stamp_out(1)
            g("s_endpgm")
    program(0)
    g.label("L_g1")
    program(1)
    g.label("L_b6only")
    g("s_barrier")
    g.label("L_end")
    g("s_endpgm")
    tail=f""".section .rodata,"a"
.p2align 6
.amdhsa_kernel {KN}
  .amdhsa_next_free_vgpr 256
  .amdhsa_next_free_sgpr 102
  .amdhsa_accum_offset 256
  .amdhsa_group_segment_fixed_size 0
  .amdhsa_kernarg_size 96
  .amdhsa_user_sgpr_count 2
  .amdhsa_user_sgpr_kernarg_segment_ptr 1
  .amdhsa_system_sgpr_workgroup_id_x 1
.end_amdhsa_kernel
"""
    return hdr+g.text()+tail

if __name__=="__main__":
    out = sys.argv[1] if len(sys.argv)>1 else "recurrent_scan__gqa_block_cached__glu_gated_glu__decode.s"
    kw={}
    for a in sys.argv[2:]:
        if a=="stamps": kw["stamps"]=1
        elif a=="lite": kw["stamps"]=2
        elif "=" in a:
            k,v=a.split("="); kw[k]=int(v)
    open(out,"w").write(gen(**kw))
```
